```python
import torch

def _softmax(x, axis=-1):
    return torch.softmax(x, dim=axis)
def _gelu(x):
    return torch.nn.functional.gelu(x, approximate="tanh")
def _silu(x):
    return torch.nn.functional.silu(x)
def _sigmoid(x):
    return torch.sigmoid(x)
def _layernorm(x, axis=-1, eps=1e-5):
    m = x.mean(dim=axis, keepdim=True)
    v = x.var(dim=axis, keepdim=True, unbiased=False)
    return (x - m) / torch.sqrt(v + eps)
def _scatter_add(tgt, idx, src, axis=0):
    return tgt.clone().index_add_(axis, idx, src)
def _segment_sum(src, seg, n):
    out = torch.zeros((n,) + src.shape[1:], dtype=src.dtype)
    return out.index_add_(0, seg, src)
def _pad(x, pw):
    flat = tuple(v for pair in reversed(pw) for v in pair)
    return torch.nn.functional.pad(x, flat)

kernel_name = 'recurrent_scan__linear_kernel_hedgehog__glu_gated_bilinear__prompt'

def setup_inputs():

    _w = (lambda a: (lambda t: t.to(torch.bfloat16) if t.is_floating_point() else t)(torch.as_tensor(a)))
    def _A_setup():
        B, S, D, H = 1, 2048, 512, 32
        Dh = D // H
        return {
            "x": _w((lambda *s: torch.randn(*s, dtype=torch.bfloat16) * 0.05)(B, S, D)),
            "wqkv": _w((lambda *s: torch.randn(*s, dtype=torch.bfloat16) * 0.8)(D, 3 * D)),
            "w_phi": _w((lambda *s: torch.randn(*s, dtype=torch.bfloat16) * 0.8)(H, Dh, Dh) * (Dh ** -0.5)),
            "wo": _w((lambda *s: torch.randn(*s, dtype=torch.bfloat16) * 0.8)(D, D)),
        }
    _A_in = _A_setup()

    def _B_setup():
        B, S, D, F = 1, 2048, 512, 1792
        return {
            "x": _w((lambda *s: torch.randn(*s, dtype=torch.bfloat16) * 0.05)(B, S, D)),
            "w_gate": _w((lambda *s: torch.randn(*s, dtype=torch.bfloat16) * 0.2)(D, F) * (D ** -0.5)),
            "w_up": _w((lambda *s: torch.randn(*s, dtype=torch.bfloat16) * 0.2)(D, F) * (D ** -0.5)),
            "w_down": _w((lambda *s: torch.randn(*s, dtype=torch.bfloat16) * 0.2)(F, D) * (F ** -0.5)),
        }
    _B_in = _B_setup()

    return {
        "A_x": _A_in["x"],
        "A_wqkv": _A_in["wqkv"],
        "A_w_phi": _A_in["w_phi"],
        "A_wo": _A_in["wo"],
        "B_x": _B_in["x"],
        "B_w_gate": _B_in["w_gate"],
        "B_w_up": _B_in["w_up"],
        "B_w_down": _B_in["w_down"],
    }

def reference(A_x, A_wqkv, A_w_phi, A_wo, B_x, B_w_gate, B_w_up, B_w_down):
    def _A_ref(x, wqkv, w_phi, wo):
        B, S, D = x.shape
        H = 32; Dh = D // H
        qkv = (lambda x, *d: x.permute(*d))((x @ wqkv).reshape(B, S, 3, H, Dh), 2, 0, 3, 1, 4)
        q, k, v = qkv[0], qkv[1], qkv[2]
        pq = torch.einsum("bhsd,hdf->bhsf", q, w_phi)
        pk = torch.einsum("bhsd,hdf->bhsf", k, w_phi)
        phi_q = torch.concatenate([_softmax(pq, axis=-1), _softmax(-pq, axis=-1)], axis=-1)
        phi_k = torch.concatenate([_softmax(pk, axis=-1), _softmax(-pk, axis=-1)], axis=-1)
        kv = torch.einsum("bhsf,bhsd->bhfd", phi_k, v)
        z  = torch.einsum("bhsf->bhf", phi_k)
        num = torch.einsum("bhqf,bhfd->bhqd", phi_q, kv)
        den = torch.einsum("bhqf,bhf->bhq", phi_q, z)[..., None] + 1e-6
        o = num / den
        return (lambda x, *d: x.permute(*d))(o, 0, 2, 1, 3).reshape(B, S, D) @ wo

    def _B_ref(x, w_gate, w_up, w_down):
        g = torch.einsum("bsd,df->bsf", x, w_gate)
        u = torch.einsum("bsd,df->bsf", x, w_up)
        h = g * u
        return torch.einsum("bsf,fd->bsd", h, w_down)

    x = A_x
    xn = _layernorm(x, axis=-1)
    s = _A_ref(xn, A_wqkv, A_w_phi, A_wo)
    g = _silu(_B_ref(xn, B_w_gate, B_w_up, B_w_down))
    return x + s * g
```

```python
import re

REG_RE = re.compile(r'(?<![\w.])([vas])(?:\[(\d+):(\d+)\]|(\d+))(?![\w])')
TRANS = ('v_exp_f32', 'v_log_f32', 'v_rcp_f32', 'v_rsq_f32', 'v_sqrt_f32')


def regs_of(op):
    out = []
    for m in REG_RE.finditer(op):
        t = m.group(1)
        if m.group(2) is not None:
            out += [(t, i) for i in range(int(m.group(2)), int(m.group(3)) + 1)]
        else:
            out.append((t, int(m.group(4))))
    if re.search(r'\bvcc(_lo|_hi)?\b', op):
        out.append(('s', 'vcc'))
    if re.search(r'\bm0\b', op):
        out.append(('s', 'm0'))
    if re.search(r'\bexec\b', op):
        out.append(('s', 'exec'))
    return out


def split_ops(s):
    ops, depth, cur = [], 0, ''
    for ch in s:
        if ch == '[':
            depth += 1
        if ch == ']':
            depth -= 1
        if ch == ',' and depth == 0:
            ops.append(cur.strip())
            cur = ''
        else:
            cur += ch
    if cur.strip():
        ops.append(cur.strip())
    return ops


class I:
    __slots__ = ('text', 'op', 'kind', 'defs', 'uses', 'tag', 'srcC', 'srcAB', 'dpp', 'arg', 'data', 'cost')

    def __init__(self, text, tag=None):
        self.text = text.strip()
        self.tag = tag
        self.defs, self.uses = [], []
        self.srcC, self.srcAB, self.data = [], [], []
        self.dpp = False
        self.arg = None
        t = self.text
        if t.endswith(':'):
            self.op, self.kind = t, 'label'
            return
        if t.startswith('@'):
            p = t.split()
            self.op, self.kind = p[0], 'pseudo'
            self.arg = p[1:]
            return
        sp = t.split(None, 1)
        op = sp[0]
        self.op = op
        ops = split_ops(sp[1]) if len(sp) > 1 else []
        R = [regs_of(o) for o in ops]
        flat = lambda L: [r for x in L for r in x]
        if op.startswith('v_mfma'):
            self.kind = 'mfma'
            self.defs = R[0]
            self.srcAB = R[1] + R[2]
            self.srcC = R[3]
            self.uses = self.srcAB + self.srcC
        elif op.startswith('ds_read'):
            self.kind = 'ds_r'
            self.defs, self.uses = R[0], flat(R[1:])
        elif op.startswith('ds_write') or op.startswith('ds_add'):
            self.kind = 'ds_w'
            self.uses = flat(R)
        elif op.startswith('buffer_load') or op.startswith('global_load'):
            if re.search(r'\blds\b', t):
                self.kind = 'vm_dma'
                self.uses = flat(R) + [('s', 'm0')]
            else:
                self.kind = 'vm_ld'
                self.defs, self.uses = R[0], flat(R[1:])
        elif op.startswith('buffer_store') or op.startswith('buffer_atomic'):
            self.kind = 'vm_st'
            self.uses = flat(R)
            self.data = R[0] if ('x4' in op or 'x3' in op) else []
            assert not (op.startswith('buffer_atomic') and re.search(r'\bsc0\b', t))
        elif op.startswith('v_permlane'):
            self.kind = 'valu'
            self.defs = flat(R)
            self.uses = flat(R)
        elif op.startswith('v_cmp'):
            self.kind = 'valu'
            self.defs, self.uses = R[0], flat(R[1:])
        elif op.startswith('v_'):
            base = op.replace('_e32', '').replace('_e64', '').replace('_dpp', '')
            self.kind = 'trans' if base in TRANS else ('dot' if base.startswith('v_dot') else 'valu')
            self.defs, self.uses = R[0], flat(R[1:])
            if base.startswith('v_fmac') or base.startswith('v_dot2c') or '_dpp' in op:
                self.uses = self.uses + R[0]
            if base in ('v_add_co_u32', 'v_addc_co_u32', 'v_sub_co_u32'):
                self.defs = R[0] + R[1]
                self.uses = flat(R[2:])
            self.dpp = '_dpp' in op
        elif op in ('s_waitcnt',):
            self.kind = 'wait'
        elif op == 's_barrier':
            self.kind = 'barrier'
        elif op == 's_nop':
            self.kind = 'nop'
            self.arg = int(ops[0])
        elif op.startswith('s_cbranch') or op in ('s_branch', 's_endpgm', 's_setpc_b64'):
            self.kind = 'branch'
        elif op.startswith('s_load') or op in ('s_memtime', 's_memrealtime'):
            self.kind = 'smem'
            self.defs, self.uses = R[0], flat(R[1:])
        elif op.startswith('s_cmp') or op in ('s_sleep', 's_setprio'):
            self.kind = 'salu'
            self.uses = flat(R)
        elif op.startswith('s_'):
            self.kind = 'salu'
            self.defs, self.uses = R[0], flat(R[1:])
            if 'saveexec' in op:
                self.defs = self.defs + [('s', 'exec')]
        elif op.startswith('.'):
            self.kind = 'directive'
        else:
            raise ValueError('unknown instr: ' + t)

    def is_valu(self):
        return self.kind in ('valu', 'trans', 'dot')

    def is_vm(self):
        return self.kind in ('vm_ld', 'vm_dma', 'vm_st')


def insert_waits(L):
    out = []
    lg = []
    vm = []
    smem = set()
    seen_tags = set()
    pend = {'vm': None, 'lg': None}

    def need(kind, n):
        cur = pend[kind]
        pend[kind] = n if cur is None else min(cur, n)

    def flush():
        parts = []
        if pend['vm'] is not None:
            n = min(pend['vm'], 62)
            parts.append('vmcnt(%d)' % n)
            del vm[:max(0, len(vm) - n)]
        if pend['lg'] is not None:
            n = min(pend['lg'], 14)
            parts.append('lgkmcnt(%d)' % n)
            del lg[:max(0, len(lg) - n)]
            if n == 0:
                smem.clear()
        pend['vm'] = pend['lg'] = None
        if parts:
            out.append(I('s_waitcnt ' + ' '.join(parts)))

    for ins in L:
        if ins.kind == 'pseudo':
            if ins.op == '@vm':
                for tag in ins.arg:
                    assert tag in seen_tags, 'unknown vm tag ' + tag
                    idx = [k for k, (t, _) in enumerate(vm) if t == tag]
                    if idx:
                        need('vm', len(vm) - 1 - idx[-1])
            elif ins.op == '@vm0':
                if vm:
                    need('vm', 0)
            elif ins.op == '@lgkm0':
                if lg or smem:
                    need('lg', 0)
            elif ins.op == '@lg':
                for tag in ins.arg:
                    idx = [k for k, (t, _) in enumerate(lg) if t == tag]
                    if idx:
                        need('lg', len(lg) - 1 - idx[-1])
            elif ins.op == '@assert_lg_done':
                for tag in ins.arg:
                    rem = lg if pend['lg'] is None else lg[max(0, len(lg) - pend['lg']):]
                    assert not [1 for (t, _) in rem if t == tag], 'LDS ops with tag %s still pending' % tag
            else:
                raise ValueError(ins.text)
            continue
        if ins.kind in ('label', 'directive'):
            flush()
            out.append(ins)
            continue
        touched = set(ins.defs) | set(ins.uses)
        if touched:
            for k in range(len(lg) - 1, -1, -1):
                if lg[k][1] & touched:
                    need('lg', len(lg) - 1 - k)
                    break
            for k in range(len(vm) - 1, -1, -1):
                if vm[k][1] & touched:
                    need('vm', len(vm) - 1 - k)
                    break
            if smem & touched:
                need('lg', 0)
        if pend['lg'] is not None and smem:
            pend['lg'] = 0
        flush()
        out.append(ins)
        if ins.kind in ('ds_r', 'ds_w'):
            lg.append((ins.tag, set(ins.defs)))
        elif ins.is_vm():
            vm.append((ins.tag, set(ins.defs)))
            seen_tags.add(ins.tag)
            assert len(vm) <= 63, 'too many VMEM ops outstanding at: ' + ins.text
        elif ins.kind == 'smem':
            smem |= set(ins.defs)
        elif ins.kind == 'wait':
            raise ValueError('use pseudo waits in traces')
    flush()
    return out


def required_states(p, c):
    n = 0
    pd = set(p.defs)
    cu, cd = set(c.uses), set(c.defs)
    vec = lambda S: {r for r in S if r[0] in 'va'}
    sc = lambda S: {r for r in S if r[0] == 's'}
    if p.is_valu():
        pv, ps = vec(pd), sc(pd)
        if pv & cu:
            if c.dpp:
                n = max(n, 2)
            if c.op.startswith('v_readfirstlane') or c.op.startswith('v_readlane'):
                n = max(n, 1)
            if c.op.startswith('v_permlane'):
                n = max(n, 2)
            if c.kind == 'mfma':
                n = max(n, 2)
            if p.kind == 'trans' and c.kind != 'trans':
                n = max(n, 1)
        if p.kind == 'dot' and pv & (cu | cd):
            if c.op == p.op:
                ops = split_ops(c.text.split(None, 1)[1])
                ab = set(regs_of(ops[1]) + regs_of(ops[2]))
                if pv & ab:
                    n = max(n, 3)
            else:
                n = max(n, 3)
        if ps & cu:
            if c.is_vm():
                n = max(n, 5)
            elif c.is_valu():
                n = max(n, 2)
            elif c.kind == 'salu':
                n = max(n, 1)
    if p.kind == 'salu' and ('s', 'm0') in pd and c.kind == 'vm_dma':
        n = max(n, 1)
    if p.kind == 'vm_st' and p.data and set(p.data) & cd:
        n = max(n, 2)
    if p.kind == 'mfma':
        big = '32x32' in p.op
        if c.kind == 'mfma':
            if pd & set(c.srcAB):
                n = max(n, 12 if big else 8)
            if pd & set(c.srcC):
                if not (list(p.defs) == list(c.srcC) and p.op == c.op):
                    n = max(n, 10 if big else 6)
            elif pd & cd:
                n = max(n, 10 if big else 6)
        elif pd & (cu | cd):
            n = max(n, 12 if big else 8)
        if c.is_valu() and set(p.srcC) & cd:
            n = max(n, 7 if big else 3)
    return n


def insert_nops(L):
    out = []
    for ins in L:
        if ins.kind in ('label', 'directive'):
            out.append(ins)
            continue
        dist = 0
        add = 0
        for p in reversed(out):
            if p.kind in ('label', 'directive'):
                continue
            r = required_states(p, ins)
            if r > dist:
                add = max(add, r - dist)
            dist += (p.arg + 1) if p.kind == 'nop' else 1
            if dist >= 12:
                break
        if add:
            out.append(I('s_nop %d' % (add - 1)))
        out.append(ins)
    return out


def finish(L):
    return insert_nops(insert_waits(L))


def text_of(L):
    return '\n'.join(('' if i.kind == 'label' else '    ') + i.text for i in L)


import subprocess, tempfile, os
_size_cache = {}

def sizes_of(L):
    todo = sorted({i.text for i in L if i.kind not in ('label', 'directive', 'branch') and i.text not in _size_cache and 'L_' not in i.text})
    if todo:
        with tempfile.NamedTemporaryFile('w', suffix='.s', delete=False) as f:
            f.write('\n'.join(todo) + '\n')
        r = subprocess.run(['llvm-mc', '-triple', 'amdgcn-amd-amdhsa', '-mcpu=gfx950', '-show-encoding', f.name],
                           capture_output=True, text=True)
        os.unlink(f.name)
        assert r.returncode == 0, r.stderr
        enc = [l for l in r.stdout.split('\n') if 'encoding:' in l]
        assert len(enc) == len(todo)
        for t, l in zip(todo, enc):
            _size_cache[t] = l.split('encoding: [')[1].count(',') + 1
    out = []
    for i in L:
        if i.kind in ('label', 'directive'):
            out.append(0)
        elif i.kind == 'branch':
            out.append(4)
        elif 'L_' in i.text:
            out.append(8)
        else:
            out.append(_size_cache[i.text])
    return out


NOPROMO = ('v_readfirstlane', 'v_cmp', 'v_add_co', 'v_addc_co', 'v_dot2c', 'v_fmac', 'v_accvgpr')

def align_runs(L, pc0):
    sz = sizes_of(L)
    out, pc = [], pc0
    last = None
    n = len(L)
    for k, ins in enumerate(L):
        if sz[k] == 8 and pc % 8 == 4:
            run, mf = 0, False
            j = k
            while j < n and sz[j] != 4 and run < 8:
                if sz[j]:
                    run += 1
                    mf |= L[j].kind == 'mfma'
                j += 1
            p = out[last[0]] if last else None
            if p is not None and last[1] == 4 and p.is_valu() and not p.op.startswith(NOPROMO) and not p.op.endswith('_e32') and last[0] == len(out) - 1:
                q = I(p.text.replace(p.op, p.op + '_e64', 1), p.tag)
                out[last[0]] = q
                pc += 4
            elif run >= 5 and not mf:
                out.append(I('s_nop 0'))
                pc += 4
        out.append(ins)
        if sz[k]:
            last = (len(out) - 1, sz[k])
        pc += sz[k]
    return out, pc
```

```python
import sys
from collections import deque
from asmlib import I, finish, text_of, align_runs, sizes_of

NAME = 'recurrent_scan__linear_kernel_hedgehog__glu_gated_bilinear__prompt_kernel'
HO_SIZE = 128 * 72 * 1024
KV_OFF = HO_SIZE
KV_SIZE = 8 * 12288
STAMP_OFF = 0xA00000

class Cfg:
    stamp = False
    sleep = 4
    stampop = 's_memrealtime'
    rot = True
    align = True
    kvsig = 5
    prefetch_code = True

S_X, S_WQKV, S_WG, S_WU, S_WD, S_WO, S_WPHI, S_OUT, S_DBG, S_HO, S_KV, S_ST = 8, 12, 16, 20, 24, 28, 32, 36, 40, 44, 48, 52
def srd(b): return 's[%d:%d]' % (b, b + 3)
sW, sRB, sJ, sIDX, sXCD = 's3', 's4', 's5', 's6', 's7'
sWA, sWB = 's6', 's7'
sWOX, sLIM = 's0', 's1'
sW4096, sJ128, sU2, sT0, sT1, sT2, sCB, sRG0 = 's56', 's57', 's58', 's59', 's60', 's61', 's62', 's63'
sH = ['s64', 's65', 's66', 's67']; sO = 's68'; sHS = ['s70', 's71', 's72', 's73']
sL2 = 's[74:75]'; sL = 's74'; sNL = 's76'; sONES = 's77'
sMA, sMB, sMC = 's[78:79]', 's[80:81]', 's[82:83]'
sMEM, sCNT, sKVB = 's84', 's85', 's69'
sKg = ['s86', 's87', 's88', 's89']; sKq = ['s90', 's91', 's92', 's93']
sHA, sHB, sHN = 's86', 's87', 's88'
STAMP0 = 94
NST = 4
FLAG_KV, FLAG_H = 4608, 5120

vL16, vPo, vSWe, vSWo, vSR = 'v2', 'v3', 'v4', 'v5', ['v6', 'v7']
vW = [['v8', 'v9'], ['v10', 'v11']]
vDq, vDg, vD2 = ['v12', 'v13'], ['v14', 'v15'], ['v16', 'v19']
vP, vL16s = 'v17', 'v18'
FR0 = 32
ACC = [64, 128]
def v4(b): return 'v[%d:%d]' % (b, b + 3)
def v2(b): return 'v[%d:%d]' % (b, b + 1)
def a4(b): return 'a[%d:%d]' % (b, b + 3)
def a2(b): return 'a[%d:%d]' % (b, b + 1)
def acc(s, sub, T, rg): return ACC[s] + ((sub * 2 + T) * 4 + rg) * 4
def xa(t, rg): return (t * 4 + rg) * 4
def mfma(d, a, b, c): return I('v_mfma_f32_16x16x32_bf16 %s, %s, %s, %s' % (d, a, b, c))
def Rx(b, i): return 128 + (i >> 1) * 64 + b * 8 + (i & 1) * 4
STG = 98304


class Trace:
    def __init__(self, name):
        self.L = []
        self.name = name
        self.stubs = []
        self.nstamp = 0
        self.names = ['start']

    def E(self, x, tag=None):
        if isinstance(x, I):
            self.L.append(x)
        elif isinstance(x, (list, tuple, deque)):
            for y in x:
                self.E(y)
        else:
            for line in x.strip().split('\n'):
                line = line.split(';')[0].strip()
                if line:
                    self.L.append(I(line, tag))

    def stamp_i(self, name=''):
        if not Cfg.stamp:
            return []
        o = []
        n = self.nstamp
        k = STAMP0 + 2 * (n % NST)
        if n >= NST:
            o.append(I('v_writelane_b32 v0, s%d, %d' % (k, n - NST)))
        self.nstamp += 1
        self.names.append(name)
        o.append(I(Cfg.stampop + ' s[%d:%d]' % (k, k + 1)))
        return o

    def stamp(self, name=''):
        self.E(self.stamp_i(name))

    def poll_issue(self, sr, soff, tag):
        return [I('buffer_load_dword %s, %s, %s, %s offen sc1' % (vP, vPo, srd(sr), soff), tag)]

    def poll_check(self, sr, soff, mask):
        k = len(self.stubs)
        back, retry = 'L_%s_back%d' % (self.name, k), 'L_%s_retry%d' % (self.name, k)
        test = ['v_cmp_ne_u32 vcc, 1, %s' % vP, 's_and_b32 vcc_lo, vcc_lo, 0x%x' % mask]
        self.stubs.append('\n'.join([
            retry + ':',
            '    s_mov_b32 %s, 0x40000' % sCNT,
            retry + '_loop:',
            '    s_sleep %d' % Cfg.sleep,
            '    buffer_load_dword %s, %s, %s, %s offen sc1' % (vP, vPo, srd(sr), soff),
            '    s_waitcnt vmcnt(0)',
            '    ' + test[0], '    s_nop 1', '    ' + test[1],
            '    s_cbranch_scc0 ' + back,
            '    s_sub_u32 %s, %s, 1' % (sCNT, sCNT),
            '    s_cbranch_scc0 %s_loop' % retry,
            '    s_branch ' + back]))
        return [I(test[0]), I(test[1]), I('s_cbranch_scc1 %s' % retry), I(back + ':')]


def signal(sr, soff, t, extra=None):
    o = [I('s_lshl_b32 %s, %s, 27' % (sT0, sW))]
    if extra:
        o.append(I('s_or_b32 %s, %s, %s' % (sT0, sT0, extra)))
    o += [I('v_lshlrev_b32 v%d, 20, v1' % t), I('v_mov_b32 v%d, 1' % (t + 1)), I('v_add_u32 v%d, %s, v%d' % (t, sT0, t)),
          I('buffer_store_dword v%d, v%d, %s, %s offen sc1' % (t + 1, t, srd(sr), soff), 'sig')]
    return o


def dma_items(desc, slot, tag):
    sr, voffs, pitch, base = desc
    items = []
    for pair in range(2):
        pre = [I('s_add_u32 m0, %s, %d' % (sW4096, slot * 16384 + pair * 2048))] + [I(x) for x in base(pair * 16 * pitch)]
        items.append((pre, I('buffer_load_dwordx4 %s, %s, %s offen lds' % (voffs[0], srd(sr), sT0), tag)))
        items.append(([], I('buffer_load_dwordx4 %s, %s, %s offen offset:1024 lds' % (voffs[1], srd(sr), sT0), tag)))
    return items

def flat_dma(items):
    out = []
    for pre, d in items:
        out += pre + [d]
    return out

def desc_p1(sr, voffs, pitch, ktab, kq, col, const):
    return (sr, voffs, pitch, lambda x: ['s_add_u32 %s, %s, %s' % (sT0, ktab[kq], col)] + (['s_add_u32 %s, %s, %d' % (sT0, sT0, const + x)] if const + x else []))

def desc_wd(n):
    return (S_WD, vD2, 1024, lambda x: ['s_cmp_gt_u32 %s, %d' % (sLIM, n), 's_cselect_b32 %s, %s, %s' % (sT0, sWA, sWB),
                                        's_add_u32 %s, %s, %d' % (sT0, sT0, n * 131072 + x)])

def desc_wo(n):
    return (S_WO, vD2, 1024, lambda x: ['s_xor_b32 %s, %s, %d' % (sT0, sWOX, (n << 17) + x)])


def cost_of(ins):
    if ins.kind in ('salu', 'pseudo', 'label', 'branch'):
        return 0
    if ins.kind == 'valu':
        return 1
    return 2


def emit_group(tr, mf, reads, dmas, fill, dma_pos=(9, 11, 13, 15)):
    n = len(mf)
    gaps = [[] for _ in range(n)]
    used = [0] * n
    for k, r in enumerate(reads):
        g = k * n // max(len(reads), n) if len(reads) > n else k
        gaps[g].append(r); used[g] += 2
    for k, (pre, d) in enumerate(dmas):
        g = dma_pos[k] if dma_pos[k] < n else n - 1
        gaps[g - 1] += pre
        gaps[g].append(d); used[g] += 2
    for g in range(n):
        tr.E(mf[g])
        tr.E(gaps[g])
        while fill:
            c = cost_of(fill[0])
            if fill[0].kind == 'mfma':
                tr.E(fill.popleft()); used[g] = 0
                continue
            if used[g] + c > 2:
                break
            tr.E(fill.popleft()); used[g] += c


def w_reads(stage, T, buf, tag):
    slot = stage % 6
    out = []
    for t in range(4):
        for s in range(2):
            d = buf + 4 * t + 2 * s
            out.append(I('ds_read_b64_tr_b16 %s, %s offset:%d' % (v2(d), vW[T][slot >= 4], (slot & 3) * 16384 + t * 4096 + s * 512), tag))
    return out


def x_reads(kq):
    out = []
    for t4 in range(4):
        for rg in range(4):
            out.append(I('ds_read_b128 %s, %s offset:%d' % (a4(xa(kq * 4 + t4, rg)), vSR[t4 & 1], (kq & 1) * 32768 + rg * 4096 + t4 * 1024), 'xr%d' % kq))
    return out


def x_write(b, i):
    return I('ds_write_b128 %s, %s offset:%d' % (vSWo if b & 1 else vSWe, v4(Rx(b, i)), (i & 1) * 32768 + (b >> 2) * 4096 + ((b >> 1) & 1) * 128), 'xw%d' % i)


def h_epilogue(s, rgs, ks_const, ks_sgpr, tmp):
    out = []
    for k, rg in enumerate(rgs):
        p = tmp + 4 * (k & 1)
        for T in range(2):
            g, u = acc(s, 0, T, rg), acc(s, 1, T, rg)
            for r in range(4):
                out.append(I('v_mul_f32 v%d, v%d, v%d' % (g + r, g + r, u + r)))
        for T in range(2):
            g = acc(s, 0, T, rg)
            out.append(I('v_cvt_pk_bf16_f32 v%d, v%d, v%d' % (p + 2 * T, g, g + 1)))
            out.append(I('v_cvt_pk_bf16_f32 v%d, v%d, v%d' % (p + 2 * T + 1, g + 2, g + 3)))
        out.append(I('s_add_u32 %s, %s, %s' % (sT1, sHS[rg], ks_sgpr)))
        out.append(I('s_add_u32 %s, %s, %d' % (sT1, sT1, ks_const)))
        out.append(I('buffer_store_dwordx4 %s, %s, %s, %s offen sc1' % (v4(p), vL16s, srd(S_HO), sT1), 'pub'))
    return out


def softmax16(p, t, dst_lo, dst_hi, pk):
    o = []
    A = lambda s: o.append(I(s))
    for k in range(5):
        A('v_max3_f32 v%d, v%d, v%d, v%d' % (t + k, p + 3 * k, p + 3 * k + 1, p + 3 * k + 2))
    A('v_max3_f32 v%d, v%d, v%d, v%d' % (t, t, t + 1, t + 2))
    A('v_max3_f32 v%d, v%d, v%d, v%d' % (t + 3, t + 3, t + 4, p + 15))
    A('v_max_f32 v%d, v%d, v%d' % (t, t, t + 3))
    A('v_mul_f32 v%d, %s, v%d' % (t, sNL, t))
    if pk:
        for k in range(0, 16, 2):
            A('v_pk_fma_f32 %s, %s, %s, %s op_sel_hi:[1,1,0]' % (v2(p + k), v2(p + k), sL2, v2(t)))
    else:
        for k in range(16):
            A('v_fma_f32 v%d, v%d, %s, v%d' % (p + k, p + k, sL, t))
    for k in range(16):
        A('v_exp_f32 v%d, v%d' % (p + k, p + k))
    if pk:
        A('v_pk_add_f32 %s, %s, %s' % (v2(t), v2(p), v2(p + 2)))
        A('v_pk_add_f32 %s, %s, %s' % (v2(t + 2), v2(p + 4), v2(p + 6)))
        A('v_pk_add_f32 %s, %s, %s' % (v2(t), v2(t), v2(p + 8)))
        A('v_pk_add_f32 %s, %s, %s' % (v2(t + 2), v2(t + 2), v2(p + 10)))
        A('v_pk_add_f32 %s, %s, %s' % (v2(t), v2(t), v2(p + 12)))
        A('v_pk_add_f32 %s, %s, %s' % (v2(t + 2), v2(t + 2), v2(p + 14)))
        A('v_pk_add_f32 %s, %s, %s' % (v2(t), v2(t), v2(t + 2)))
        A('v_add_f32 v%d, v%d, v%d' % (t, t, t + 1))
    else:
        for k in range(4):
            A('v_add_f32 v%d, v%d, v%d' % (t + k, p + k, p + 4 + k))
        for j in (8, 12):
            for k in range(4):
                A('v_add_f32 v%d, v%d, v%d' % (t + k, t + k, p + j + k))
        A('v_add_f32 v%d, v%d, v%d' % (t, t, t + 1))
        A('v_add_f32 v%d, v%d, v%d' % (t + 2, t + 2, t + 3))
        A('v_add_f32 v%d, v%d, v%d' % (t, t, t + 2))
    A('v_rcp_f32 v%d, v%d' % (t, t))
    if pk:
        for k in range(0, 16, 2):
            A('v_pk_mul_f32 %s, %s, %s op_sel_hi:[1,0]' % (v2(p + k), v2(p + k), v2(t)))
    else:
        for k in range(16):
            A('v_mul_f32 v%d, v%d, v%d' % (p + k, p + k, t))
    for k in range(4):
        A('v_cvt_pk_bf16_f32 v%d, v%d, v%d' % (dst_lo + k, p + 2 * k, p + 2 * k + 1))
    for k in range(4):
        A('v_cvt_pk_bf16_f32 v%d, v%d, v%d' % (dst_hi + k, p + 8 + 2 * k, p + 8 + 2 * k + 1))
    return o


PHI = 192

def wphi_dma():
    return [([I('s_add_u32 m0, %s, %d' % (sW4096, STG)),
              I('s_lshl_b32 %s, %s, 4' % (sT0, sJ128)),
              I('s_and_b32 %s, %s, 1' % (sT2, sW)),
              I('s_lshl_b32 %s, %s, 10' % (sT2, sT2)),
              I('s_add_u32 %s, %s, %s' % (sT0, sT0, sT2))],
             I('buffer_load_dwordx4 %s, %s, %s offen lds' % (vL16, srd(S_WPHI), sT0), 'wphi'))]


def build_phi():
    o = []
    A = lambda s, tag=None: o.append(I(s, tag))
    A('v_bfe_u32 v20, v1, 1, 1')
    A('v_lshlrev_b32 v20, 9, v20')
    A('v_lshrrev_b32 v21, 2, v1')
    A('v_lshl_add_u32 v20, v21, 5, v20')
    A('s_add_u32 %s, %s, %d' % (sT1, sW4096, STG))
    A('v_add_u32 v20, %s, v20' % sT1)
    A('v_and_b32 v21, 1, v21')
    A('s_mov_b32 %s, 0x80008000' % sT1)
    A('v_mul_lo_u32 v21, v21, %s' % sT1)
    A('s_mov_b32 s78, 0x00ff00ff')
    A('s_mov_b32 s79, 0x00ff00ff')
    A('@vm wphi')
    for t in range(4):
        A('ds_read_b64_tr_b16 %s, v20 offset:%d' % (v2(224 + 2 * t), t * 8), 'phir')
    for t in range(4):
        for e in range(2):
            A('v_xor_b32 v%d, v%d, v21' % (224 + 2 * t + e, 224 + 2 * t + e))
        for e in range(2):
            A('v_cndmask_b32 v%d, 0, v%d, %s' % (PHI + 4 * t + e, 224 + 2 * t + e, sMA))
            A('v_cndmask_b32 v%d, v%d, 0, %s' % (PHI + 4 * t + 2 + e, 224 + 2 * t + e, sMA))
    return o


def feature_map(s, rg, dst_lo, dst_hi, pk):
    o = []
    kf = 20 + 4 * (rg & 1)
    p = 224 + 16 * (rg & 1)
    for T in range(2):
        k = acc(s, 0, T, rg)
        o.append(I('v_cvt_pk_bf16_f32 v%d, v%d, v%d' % (kf + 2 * T, k, k + 1)))
        o.append(I('v_cvt_pk_bf16_f32 v%d, v%d, v%d' % (kf + 2 * T + 1, k + 2, k + 3)))
    for t in range(4):
        o.append(mfma(v4(p + 4 * t), v4(PHI + 4 * t), v4(kf), '0'))
    return o, p


def k_epilogue(tr, pk):
    o = []
    A = lambda s, tag=None: o.append(I(s, tag))
    o += build_phi()
    VF = 208
    for T in range(2):
        for kap in range(2):
            for h in range(2):
                v = acc(0, 1, T, 2 * kap + h)
                d = VF + (T * 2 + kap) * 4 + 2 * h
                A('v_cvt_pk_bf16_f32 v%d, v%d, v%d' % (d, v, v + 1))
                A('v_cvt_pk_bf16_f32 v%d, v%d, v%d' % (d + 1, v + 2, v + 3))
    A('v_and_b32 v96, 15, v1')
    A('v_lshrrev_b32 v97, 4, v1')
    A('v_lshlrev_b32 v97, 1, v97')
    A('v_and_b32 v98, 7, v1')
    A('v_xor_b32 v97, v97, v98')
    A('v_lshlrev_b32 v97, 4, v97')
    A('v_lshl_add_u32 v96, v96, 7, v97')
    A('s_add_u32 %s, %s, %d' % (sT1, sW4096, STG))
    A('v_add_u32 v96, %s, v96' % sT1)
    A('v_xor_b32 v97, 16, v96')
    pre = [feature_map(0, rg, 0, 0, pk) for rg in range(4)]
    o += pre[0][0]
    for rg in range(4):
        if rg + 1 < 4:
            o += pre[rg + 1][0]
        lo, hi = acc(0, 0, 0, rg), acc(0, 0, 1, rg)
        o += softmax16(pre[rg][1], 100, lo, hi, pk)
        off = (rg >> 1) * 16384 + (rg & 1) * 2048
        A('ds_write_b128 v96, %s offset:%d' % (v4(lo), off), 'phiw')
        A('ds_write_b128 v97, %s offset:%d' % (v4(hi), off), 'phiw')
    A('v_lshrrev_b32 v96, 2, v1')
    A('v_and_b32 v97, 7, v96')
    A('v_bfe_u32 v98, v1, 1, 1')
    A('v_xor_b32 v97, v97, v98')
    A('v_lshlrev_b32 v97, 4, v97')
    A('v_lshl_add_u32 v96, v96, 7, v97')
    A('v_and_b32 v98, 1, v1')
    A('v_lshl_add_u32 v96, v98, 3, v96')
    A('v_add_u32 v20, %s, v96' % sT1)
    for cb in range(1, 4):
        A('v_xor_b32 v%d, %d, v20' % (20 + cb, cb * 32))
    for k in range(4):
        A('v_mov_b32 v%d, %s' % (28 + k, sONES))
    for cb in range(4):
        for kap in range(2):
            for s in range(2):
                A('ds_read_b64_tr_b16 %s, v%d offset:%d' % (v2(224 + (cb * 2 + kap) * 4 + 2 * s), 20 + cb, kap * 16384 + s * 2048), 'phir')
    for cb in range(4):
        for kap in range(2):
            b = v4(224 + (cb * 2 + kap) * 4)
            o.append(mfma(v4(96 + 4 * cb), v4(VF + ((cb >> 1) * 2 + kap) * 4), b, '0' if kap == 0 else v4(96 + 4 * cb)))
        for kap in range(2):
            b = v4(224 + (cb * 2 + kap) * 4)
            o.append(mfma(v4(112 + 4 * cb), v4(28), b, '0' if kap == 0 else v4(112 + 4 * cb)))
    A('v_lshrrev_b32 v24, 4, v1')
    A('v_and_b32 v25, 15, v1')
    A('v_lshlrev_b32 v25, 2, v25')
    A('v_lshl_add_u32 v24, v24, 8, v25')
    A('v_lshlrev_b32 v25, 2, v1')
    A('s_mov_b32 s78, 0xffff0000'); A('s_mov_b32 s79, 0')
    A('s_mov_b32 s80, 0'); A('s_mov_b32 s81, 0x0000ffff')
    A('s_mov_b32 s82, 0'); A('s_mov_b32 s83, 0xffff0000')
    A('@vm zpoll')
    o += tr.poll_check(S_DBG, '0', 0xff)
    for cb in range(4):
        for r in range(4):
            A('buffer_atomic_add_f32 v%d, v24, %s, %s offen offset:%d' % (96 + 4 * cb + r, srd(S_KV), sKVB, cb * 1024 + r * 64), 'kvat')
    A('v_cndmask_b32 v112, v112, v116, %s' % sMA)
    A('v_cndmask_b32 v112, v112, v120, %s' % sMB)
    A('v_cndmask_b32 v112, v112, v124, %s' % sMC)
    A('s_add_u32 %s, %s, 4096' % (sT1, sKVB))
    A('buffer_atomic_add_f32 v112, v25, %s, %s offen' % (srd(S_KV), sT1), 'kvat')
    return o


PQ = 160

def q_epilogue(pk):
    o = build_phi()
    pre = [feature_map(1, rg, 0, 0, pk) for rg in range(4)]
    o += pre[0][0]
    for rg in range(4):
        if rg + 1 < 4:
            o += pre[rg + 1][0]
        o += softmax16(pre[rg][1], 208, PQ + 8 * rg, PQ + 8 * rg + 4, pk)
    return o


def o_loads():
    o = []
    A = lambda s, tag=None: o.append(I(s, tag))
    A('v_lshlrev_b32 v20, 6, v1')
    A('v_lshrrev_b32 v21, 4, v1')
    A('v_lshlrev_b32 v21, 6, v21')
    A('s_add_u32 %s, %s, 4096' % (sT1, sKVB))
    for e in range(4):
        A('buffer_load_dwordx4 %s, v20, %s, %s offen offset:%d sc1' % (v4(192 + 4 * e), srd(S_KV), sKVB, 16 * e), 'kvld')
    for e in range(4):
        A('buffer_load_dwordx4 %s, v21, %s, %s offen offset:%d sc1' % (v4(208 + 4 * e), srd(S_KV), sT1, 16 * e), 'kvld')
    return o


def o_phase():
    o = []
    A = lambda s, tag=None: o.append(I(s, tag))
    A('s_mov_b32 s78, -1'); A('s_mov_b32 s79, 0')
    A('s_mov_b32 s80, 0x11111111'); A('s_mov_b32 s81, 0x22222222')
    for k in range(8):
        A('v_cvt_pk_bf16_f32 v%d, v%d, v%d' % (224 + k, 192 + 2 * k, 193 + 2 * k))
    for k in range(8):
        A('v_cvt_pk_bf16_f32 v%d, v%d, v%d' % (248 + k, 208 + 2 * k, 209 + 2 * k))
    for k in range(8):
        A('v_cndmask_b32 v%d, 0, v%d, %s' % (232 + k, 224 + k, sMA))
        A('v_cndmask_b32 v%d, v%d, 0, %s' % (240 + k, 224 + k, sMA))
        A('v_cndmask_b32 v%d, 0, v%d, %s' % (248 + k, 248 + k, sMB))
    res = [128, 140, 192, 204]
    for rg in range(4):
        for w, a in enumerate((248, 232, 240)):
            d = res[rg] + 4 * w
            for u in range(2):
                o.append(mfma(v4(d), v4(a + 4 * u), v4(PQ + 8 * rg + 4 * u), '0' if u == 0 else v4(d)))
    A('s_mov_b32 %s, 0x358637bd' % sT2)
    for rg in range(4):
        d = res[rg]
        p = 152 + 4 * (rg & 1)
        for h in range(2):
            A('v_add_f32 v%d, %s, v%d' % (d + h, sT2, d + h))
        for h in range(2):
            A('v_rcp_f32 v%d, v%d' % (d + h, d + h))
        for h in range(2):
            for r in range(4):
                A('v_mul_f32 v%d, v%d, v%d' % (d + 4 + 4 * h + r, d + 4 + 4 * h + r, d + h))
        for k in range(4):
            A('v_cvt_pk_bf16_f32 v%d, v%d, v%d' % (p + k, d + 4 + 2 * k, d + 5 + 2 * k))
        A('s_lshl_b32 %s, %s, 4' % (sT1, sJ128))
        A('s_add_u32 %s, %s, %s' % (sT1, sT1, sHS[rg]))
        A('s_add_u32 %s, %s, %d' % (sT1, sT1, 56 * 1024))
        A('buffer_store_dwordx4 %s, %s, %s, %s offen sc1' % (v4(p), vL16s, srd(S_HO), sT1), 'pub')
    return o


def build_srd(tr, b, lo, size):
    tr.E('s_mov_b32 s%d, s%d' % (b, lo))
    tr.E('s_mov_b32 s%d, s%d' % (b + 1, lo + 1))
    tr.E('s_mov_b32 s%d, 0x%x' % (b + 2, size))
    tr.E('s_mov_b32 s%d, 0x20000' % (b + 3))


def common_head():
    tr = Trace('h')
    E = tr.E
    E('s_cmp_ge_u32 s2, 256')
    E('s_cbranch_scc1 L_end')
    E('s_load_dwordx16 s[64:79], s[0:1], 0')
    E('s_load_dwordx4 s[80:83], s[0:1], 64')
    E('s_load_dwordx2 s[84:85], s[0:1], 80')
    if Cfg.stamp:
        E(Cfg.stampop + ' s[%d:%d]' % (STAMP0, STAMP0 + 1))
    E('s_bitcmp1_b32 s2, 7')
    E('s_cbranch_scc1 L_trace_q')
    return tr


def merge(a, b):
    out, j = [], 0
    for i, x in enumerate(a):
        out.append(x)
        tgt = (i + 1) * len(b) // len(a)
        while j < tgt:
            y = b[j]; j += 1
            out += y if isinstance(y, list) else [y]
    return out


def prologue(tr, isq, stages):
    E = tr.E
    tr.nstamp = 1
    sMU, sKAP, sXB = 's86', 's87', 's88'
    XO = 52
    E('v_and_b32 v1, 63, v0')
    E('v_lshrrev_b32 v20, 6, v0')
    E('v_lshrrev_b32 v21, 4, v1')
    E('v_readfirstlane_b32 %s, v20' % sW)
    E('v_and_b32 v22, 15, v1')
    E('v_lshlrev_b32 v23, 10, v21')
    E('v_lshl_add_u32 v23, v22, 4, v23')
    E('s_and_b32 %s, s2, 7' % sXCD)
    E('s_lshr_b32 %s, s2, 3' % sIDX)
    E('s_lshr_b32 %s, %s, 2' % (sRB, sXCD))
    E('s_lshl_b32 %s, %s, 3' % (sRB, sRB))
    E('s_and_b32 %s, %s, 7' % (sT0, sIDX))
    E('s_add_u32 %s, %s, %s' % (sRB, sRB, sT0))
    if Cfg.rot:
        E('s_lshr_b32 %s, s2, 6' % sMU)
        E('s_and_b32 %s, %s, 3' % (sKAP, sIDX))
    else:
        E('s_mov_b32 %s, 0' % sMU)
        E('s_mov_b32 %s, 0' % sKAP)
    E('s_lshl_b32 %s, %s, 8' % (sT0, sKAP))
    E('v_add_u32 v%d, %s, v23' % (XO, sT0))
    for i in range(1, 4):
        E('v_xor_b32 v%d, %d, v%d' % (XO + i, 256 * i, XO))
    E('s_bfe_u32 %s, s2, 0x10006' % sT0)
    if isq:
        E('s_mov_b32 %s, %s' % (sT1, sW))
    else:
        E('s_xor_b32 %s, %s, %s' % (sT1, sW, sT0))
    E('s_lshl_b32 %s, %s, 15' % (sT1, sT1))
    E('s_lshl_b32 %s, %s, 17' % (sT2, sRB))
    E('s_add_u32 %s, %s, %s' % (sXB, sT1, sT2))
    E('s_lshl_b32 %s, %s, 13' % (sT1, sMU))
    E('s_add_u32 %s, %s, %s' % (sXB, sXB, sT1))
    E('s_and_b32 %s, %s, 3' % (sJ, sXCD))
    E('s_lshl_b32 %s, %s, 1' % (sJ, sJ))
    E('s_add_u32 %s, %s, %s' % (sJ, sJ, sT0))
    tr.L.append(I('s_nop 0'))
    tr.L[-1].text = 's_waitcnt lgkmcnt(0)'
    tr.stamp('karg')
    build_srd(tr, S_X, 64, 0x200000)
    sXO = 's89'
    def xload(b):
        o = []
        for i in range(4):
            pre = [I('s_xor_b32 %s, %s, %d' % (sXO, sXB, b << 12))] if i == 0 else []
            o.append(pre + [I('buffer_load_dwordx4 %s, v%d, %s, %s offen' % (v4(Rx(b, i)), XO + i, srd(S_X), sXO), 'x%d' % b)])
        return o
    for b in range(3):
        E(xload(b))
    if Cfg.prefetch_code:
        E('s_getpc_b64 s[72:73]')
        E('L_pc_%s:' % tr.name)
        E('s_lshl_b32 %s, %s, 12' % (sT0, sIDX))
        E('v_lshlrev_b32 v26, 4, v0')
        E('v_add_u32 v26, %s, v26' % sT0)
        E('v_min_u32 v26, L_code_end-%s-16, v26' % NAME)
        E('s_sub_u32 s72, s72, L_pc_%s-%s' % (tr.name, NAME))
        E('s_subb_u32 s73, s73, 0')
        E('v_mov_b32 v27, s73')
        E('v_add_co_u32 v26, vcc, s72, v26')
        E('v_addc_co_u32 v27, vcc, 0, v27, vcc')
        E('global_load_dwordx4 v[28:31], v[26:27], off', 'pf')
    build_srd(tr, S_WQKV, 66, 512 * 3072)
    build_srd(tr, S_WPHI, 68, 32 * 512)
    build_srd(tr, S_WO, 70, 512 * 1024)
    if Cfg.rot:
        E('s_bitcmp1_b32 %s, 2' % sIDX)
        E('s_cselect_b64 s[%d:%d], s[76:77], s[74:75]' % (S_WG, S_WG + 1))
        E('s_cselect_b64 s[%d:%d], s[74:75], s[76:77]' % (S_WU, S_WU + 1))
        for b in (S_WG, S_WU):
            E('s_mov_b32 s%d, 0x%x' % (b + 2, 512 * 3584))
            E('s_mov_b32 s%d, 0x20000' % (b + 3))
    else:
        build_srd(tr, S_WG, 74, 512 * 3584)
        build_srd(tr, S_WU, 76, 512 * 3584)
    build_srd(tr, S_WD, 78, 1792 * 1024)
    build_srd(tr, S_OUT, 80, 0x200000)
    build_srd(tr, S_DBG, 82, 256)
    build_srd(tr, S_HO, 84, HO_SIZE)
    E('s_add_u32 s%d, s84, 0x%x' % (S_KV, KV_OFF))
    E('s_addc_u32 s%d, s85, 0' % (S_KV + 1))
    E('s_mov_b32 s%d, 0x%x' % (S_KV + 2, KV_SIZE))
    E('s_mov_b32 s%d, 0x20000' % (S_KV + 3))
    if Cfg.stamp:
        E('s_add_u32 s%d, s84, 0x%x' % (S_ST, STAMP_OFF))
        E('s_addc_u32 s%d, s85, 0' % (S_ST + 1))
        E('s_mov_b32 s%d, 0x40000' % (S_ST + 2))
        E('s_mov_b32 s%d, 0x20000' % (S_ST + 3))
    if not isq:
        E('s_cmp_eq_u32 %s, 0' % sRB)
        E('s_cselect_b32 %s, 0, 0x40000000' % sT0)
        E('v_lshlrev_b32 v26, 4, v0')
        E('v_add_u32 v26, %s, v26' % sT0)
        for k in range(4):
            E('v_mov_b32 v%d, 0' % (56 + k))
        E('s_mul_i32 %s, %s, 12288' % (sT0, sJ))
        for k in range(3):
            E('buffer_store_dwordx4 v[56:59], v26, %s, %s offen sc1' % (srd(S_KV), sT0), 'zero')
            if k < 2:
                E('s_add_u32 %s, %s, 4096' % (sT0, sT0))
    E('s_lshl_b32 %s, %s, 12' % (sW4096, sW))
    E('s_lshl_b32 %s, %s, 7' % (sJ128, sJ))
    if isq:
        E('s_lshl_b32 %s, %s, 8' % (sU2, sJ))
    else:
        E('s_lshr_b32 %s, %s, 1' % (sU2, sJ))
        E('s_lshl_b32 %s, %s, 7' % (sU2, sU2))
    E('v_lshlrev_b32 %s, 4, v1' % vL16)
    E('s_and_b32 %s, %s, 1' % (sT0, sMU))
    E('s_lshl_b32 %s, %s, 7' % (sT0, sT0))
    E('v_xor_b32 %s, %s, %s' % (vL16s, sT0, vL16))
    E('v_lshlrev_b32 %s, 2, v22' % vPo)
    E('v_lshrrev_b32 v23, 3, v1')
    E('s_lshl_b32 %s, %s, 5' % (sT0, sW))
    E('v_add_u32 v23, %s, v23' % sT0)
    E('v_and_b32 v24, 7, v1')
    E('v_and_b32 v25, 1, v21')
    E('v_lshlrev_b32 v25, 1, v25')
    E('v_xor_b32 v25, v25, v24')
    E('v_lshlrev_b32 v25, 4, v25')
    for vd, pitch in ((vDq, 3072), (vDg, 3584)):
        E('s_movk_i32 %s, %d' % (sT0, pitch))
        E('v_mad_u32_u24 %s, v23, %s, v25' % (vd[0], sT0))
        E('v_xor_b32 %s, 64, %s' % (vd[1], vd[0]))
        E('v_add_u32 %s, %d, %s' % (vd[1], 8 * pitch - 1024, vd[1]))
    E('v_lshlrev_b32 v25, 1, v21')
    E('v_xor_b32 v25, v25, v24')
    E('v_lshlrev_b32 v25, 4, v25')
    E('v_lshl_add_u32 %s, v23, 10, v25' % vD2[0])
    E('v_add_u32 %s, %d, %s' % (vD2[1], 7168, vD2[0]))
    E('v_lshlrev_b32 %s, 8, v22' % vSWe)
    E('v_xor_b32 v25, v21, v24')
    E('v_lshl_add_u32 %s, v25, 4, %s' % (vSWe, vSWe))
    E('s_lshl_b32 %s, %s, 13' % (sT0, sW))
    E('s_add_u32 %s, %s, %d' % (sT0, sT0, STG))
    E('v_add_u32 %s, %s, %s' % (vSWe, sT0, vSWe))
    E('v_xor_b32 %s, 64, %s' % (vSWo, vSWe))
    E('v_xor_b32 v25, v22, v21')
    E('v_lshlrev_b32 v25, 4, v25')
    E('v_lshl_add_u32 %s, v21, 8, v25' % vSR[0])
    E('s_lshr_b32 %s, %s, 1' % (sT0, sW))
    E('s_lshl_b32 %s, %s, 14' % (sT0, sT0))
    E('s_add_u32 %s, %s, %d' % (sT0, sT0, STG))
    E('v_add_u32 %s, %s, %s' % (vSR[0], sT0, vSR[0]))
    E('v_xor_b32 %s, 64, %s' % (vSR[1], vSR[0]))
    E('v_bfe_u32 v25, v1, 2, 2')
    E('v_lshl_add_u32 v25, v21, 3, v25')
    E('v_lshlrev_b32 v25, 7, v25')
    E('v_and_b32 v26, 3, v1')
    E('v_lshl_add_u32 v25, v26, 3, v25')
    E('v_bfe_u32 v26, v1, 3, 2')
    E('s_and_b32 %s, %s, 1' % (sT0, sW))
    E('s_lshl_b32 %s, %s, 1' % (sT1, sT0))
    E('v_xor_b32 v26, %s, v26' % sT1)
    E('v_lshl_add_u32 %s, v26, 5, v25' % vW[0][0])
    E('v_xor_b32 %s, 32, %s' % (vW[1][0], vW[0][0]))
    E('v_add_u32 %s, 0x10000, %s' % (vW[0][1], vW[0][0]))
    E('v_add_u32 %s, 0x10000, %s' % (vW[1][1], vW[1][0]))
    E('s_lshl_b32 %s, %s, 10' % (sT0, sT0))
    E('s_lshr_b32 %s, %s, 1' % (sT1, sW))
    E('s_lshl_b32 %s, %s, 2' % (sT1, sT1))
    E('s_lshl_b32 %s, %s, 3' % (sT2, sRB))
    E('s_add_u32 %s, %s, %s' % (sT1, sT1, sT2))
    if isq:
        E('s_lshr_b32 %s, %s, 1' % (sT2, sMU))
    else:
        E('s_and_b32 %s, %s, 1' % (sT2, sJ))
        E('s_lshl_b32 %s, %s, 1' % (sT2, sT2))
    for rg in range(4):
        E('s_add_u32 %s, %s, %d' % (sHS[rg], sT1, rg))
        E('s_xor_b32 %s, %s, %s' % (sHS[rg], sHS[rg], sT2))
        E('s_mul_i32 %s, %s, 73728' % (sHS[rg], sHS[rg]))
        E('s_add_u32 %s, %s, %s' % (sHS[rg], sHS[rg], sT0))
    E('s_and_b32 %s, %s, 1' % (sT0, sW))
    E('s_mul_i32 %s, %s, 6144' % (sT0, sT0))
    E('s_mul_i32 %s, %s, 12288' % (sKVB, sJ))
    E('s_add_u32 %s, %s, %s' % (sKVB, sKVB, sT0))
    E('s_and_b32 %s, %s, 3' % (sT0, sXCD))
    E('s_lshl_b32 %s, %s, 2' % (sT0, sT0))
    E('s_lshr_b32 %s, s2, 6' % sT1)
    E('s_add_u32 %s, %s, %s' % (sT0, sT0, sT1))
    E('s_lshl_b32 %s, %s, 2' % (sT0, sT0))
    E('s_mul_i32 %s, %s, 6144' % (sMEM, sRB))
    E('s_add_u32 %s, %s, %s' % (sMEM, sMEM, sT0))
    E('s_add_u32 %s, %s, %d' % (sMEM, sMEM, FLAG_H))
    E('s_and_b32 %s, %s, 3' % (sT1, sIDX))
    E('s_lshr_b32 %s, %s, 2' % (sT2, sIDX))
    E('s_lshl_b32 %s, %s, 7' % (sCB, sT2))
    E('s_lshl_b32 %s, %s, 2' % (sRG0, sT1))
    E('s_lshl_b32 %s, %s, 4' % (sT0, sXCD))
    E('s_add_u32 %s, %s, %s' % (sRG0, sRG0, sT0))
    if Cfg.rot:
        E('s_lshl_b32 %s, %s, 1' % (sT1, sT1))
        E('s_add_u32 %s, %s, %s' % (sT1, sT1, sT2))
        E('s_and_b32 %s, %s, 7' % (sT1, sT1))
        E('s_lshr_b32 %s, %s, 1' % (sWOX, sT1))
        E('s_mul_i32 %s, %s, 7' % (sT1, sT1))
        E('s_lshr_b32 %s, %s, 2' % (sT1, sT1))
    else:
        E('s_mov_b32 %s, 0' % sT1)
        E('s_mov_b32 %s, 0' % sWOX)
    E('s_sub_u32 %s, 14, %s' % (sLIM, sT1))
    E('s_lshl_b32 %s, %s, 17' % (sWA, sT1))
    E('s_add_u32 %s, %s, %s' % (sWA, sWA, sCB))
    E('s_sub_u32 %s, %s, %d' % (sWB, sWA, 14 * 131072))
    E('s_lshl_b32 %s, %s, 17' % (sWOX, sWOX))
    E('s_add_u32 %s, %s, %s' % (sWOX, sWOX, sCB))
    E('s_mov_b32 s74, 0x3fb8aa3b')
    E('s_mov_b32 s75, 0x3fb8aa3b')
    E('s_mov_b32 %s, 0xbfb8aa3b' % sNL)
    E('s_mov_b32 %s, 0x3f803f80' % sONES)
    E('s_mov_b32 s78, %s' % sXB)
    E('s_mov_b32 s79, %s' % sKAP)
    sXB, sXO = 's78', 's80'
    for kq in range(4):
        E('s_xor_b32 %s, s79, %d' % (sT0, kq))
        E('s_mul_i32 %s, %s, %d' % (sKg[kq], sT0, 128 * 3584))
        E('s_mul_i32 %s, %s, %d' % (sKq[kq], sT0, 128 * 3072))
    E(flat_dma(dma_items(stages[0], 0, 'st0')))
    sINV, sEPS = 's81', 's82'
    E('s_mov_b32 %s, 0x3b000000' % sINV)
    E('s_mov_b32 %s, 0x3727c5ac' % sEPS)
    tr.stamp('setup')
    S = lambda b: 36 + 8 * (b & 1)
    def stats(b):
        o = []
        for i in range(4):
            for e in range(4):
                r = Rx(b, i) + e
                first = i == 0 and e == 0
                o.append(I('v_dot2_f32_bf16 v%d, v%d, %s, %s' % (S(b), r, sONES, '0' if first else 'v%d' % S(b))))
                o.append(I('v_dot2_f32_bf16 v%d, v%d, v%d, %s' % (S(b) + 1, r, r, '0' if first else 'v%d' % (S(b) + 1))))
        return o
    def red(b):
        o = []
        A = lambda x: o.append(I(x))
        z = S(b)
        for ror in (8, 4, 2, 1):
            for k in range(2):
                A('v_add_f32_dpp v%d, v%d, v%d row_ror:%d row_mask:0xf bank_mask:0xf' % (z + k, z + k, z + k, ror))
        A('v_mul_f32 v%d, %s, v%d' % (z + 2, sINV, z))
        A('v_mul_f32 v%d, v%d, v%d' % (z + 3, z + 2, z + 2))
        A('v_fma_f32 v%d, v%d, %s, -v%d' % (z + 3, z + 1, sINV, z + 3))
        A('v_max_f32 v%d, 0, v%d' % (z + 3, z + 3))
        A('v_add_f32 v%d, %s, v%d' % (z + 3, sEPS, z + 3))
        A('v_rsq_f32 v%d, v%d' % (z + 3, z + 3))
        A('v_cvt_pk_bf16_f32 v%d, v%d, 0' % (z + 4, z + 3))
        A('v_lshlrev_b32 v%d, 16, v%d' % (z + 5, z + 4))
        A('v_mul_f32 v%d, -v%d, v%d' % (z + 6, z + 2, z + 5))
        return o
    def norm(b, order):
        o = []
        z = S(b)
        for i in order:
            t = 64 + 8 * (i & 1)
            for e in range(4):
                r = Rx(b, i) + e
                o.append(I('v_dot2_f32_bf16 v%d, v%d, v%d, v%d' % (t + 2 * e, r, z + 4, z + 6)))
                o.append(I('v_dot2_f32_bf16 v%d, v%d, v%d, v%d' % (t + 2 * e + 1, r, z + 5, z + 6)))
            for e in range(4):
                o.append(I('v_cvt_pk_bf16_f32 v%d, v%d, v%d' % (Rx(b, i) + e, t + 2 * e, t + 2 * e + 1)))
            if i < 2:
                o.append(x_write(b, i))
        return o
    wq = deque()
    for st in range(1, 6):
        for pre, d in dma_items(stages[st], st, 'st%d' % st):
            wq.append(pre + [d])
    for b in range(8):
        E('@vm x%d' % b)
        if Cfg.stamp and b in (0, 4, 7):
            tr.stamp('x%d' % b)
        if b + 3 < 8:
            E(merge(stats(b), xload(b + 3)))
        else:
            E(merge(stats(b), [wq.popleft() for _ in range(2)]))
        body = merge(norm(b - 1, range(4)), red(b)) if b else red(b)
        if b >= 4:
            body = merge(body, [wq.popleft() for _ in range(4 if b > 4 else 2)])
        E(body)
    assert not wq
    E(norm(7, range(4)))
    tr.stamp('ln')
    E('@vm st0')
    E('@lgkm0')
    E('s_barrier')
    tr.stamp('b0')
    xr = x_reads(0)
    wr = w_reads(0, 0, FR0, 'w0')
    E(xr[0:16:4]); E(wr)
    E([xr[k] for rg in range(1, 4) for k in range(rg, 16, 4)])
    if not isq:
        E('s_lshl_b32 %s, %s, 2' % (sT1, sJ))
        E('s_cmp_eq_u32 %s, 0' % sRB)
        E('s_cselect_b32 %s, 0, 0x1000' % sT2)
        E(signal(S_DBG, sT1, 20, sT2))


class Ring:
    def __init__(self, stages):
        self.stages = stages
        self.n1 = len(stages)
        self.next = 6
        self.pending = deque()

    def release(self, stage):
        s = stage + 6
        assert s == self.next, (s, self.next)
        self.next += 1
        if s < self.n1:
            self.pending.extend(dma_items(self.stages[s], s % 6, 'st%d' % s))
        elif s - self.n1 < 14:
            self.pending.extend(dma_items(desc_wd(s - self.n1), s % 6, 'wd%d' % (s - self.n1)))

    def take(self, k):
        out = []
        while self.pending and len(out) < k:
            out.append(self.pending.popleft())
        return out


def full_chunk(tr, ring, s0, nsub, aset, swap_sub1, next_first, hooks=None, fill=None, extra_dma=None):
    hooks = hooks or {}
    fill = fill if fill is not None else deque()
    extra_dma = extra_dma if extra_dma is not None else deque()
    nst = 4 * nsub
    for k in range(nst):
        st = s0 + k
        sub, kq = (k % nsub, k // nsub)
        for T in range(2):
            h = hooks.get((k, T), {})
            buf = FR0 + 16 * T
            if T == 1 and st + 1 < ring.n1:
                tr.E('@vm st%d' % (st + 1))
                tr.E('@lg w%d' % st)
                tr.E(h.get('pre', []))
                tr.E('s_barrier')
                ring.release(st)
            tr.E(h.get('post', []))
            mf = []
            for rg in range(4):
                d = v4(acc(aset, sub, T, rg))
                for t in range(4):
                    w, x = v4(buf + 4 * t), a4(xa(kq * 4 + t, rg))
                    c = '0' if (kq == 0 and t == 0) else d
                    mf.append(mfma(d, x, w, c) if (swap_sub1 and sub == 1) else mfma(d, w, x, c))
            if T == 0:
                reads = w_reads(st, 1, FR0 + 16, 'w%d' % st)
            elif k + 1 < nst:
                reads = w_reads(st + 1, 0, FR0, 'w%d' % (st + 1))
            else:
                reads = next_first() if next_first else []
            dm = ring.take(2)
            if extra_dma and T == 0:
                dm += [extra_dma.popleft(), extra_dma.popleft()]
            loc = deque(h.get('fill', []))
            if loc:
                emit_group(tr, mf, reads, dm, loc)
                tr.E(loc)
            else:
                emit_group(tr, mf, reads, dm, fill)


def first_chunk_hooks():
    H = {}
    r1, r2, r3 = x_reads(1), x_reads(2), x_reads(3)
    w2 = [x_write(b, 2) for b in range(8)]
    w3 = [x_write(b, 3) for b in range(8)]
    H[(0, 0)] = dict(fill=r1[0:7])
    H[(0, 1)] = dict(fill=w2[0:4] + r1[7:9], pre=[I('@lg xr0')])
    H[(1, 0)] = dict(fill=w2[4:8] + r1[9:11])
    H[(1, 1)] = dict(fill=r1[11:16], pre=[I('@lg xw2')])
    H[(2, 0)] = dict(fill=r2[0:6])
    H[(2, 1)] = dict(fill=w3[0:4] + r2[6:8], pre=[I('@lg xr1')])
    H[(3, 0)] = dict(fill=w3[4:8] + r2[8:10])
    H[(3, 1)] = dict(fill=r2[10:16], pre=[I('@lg xw3')])
    H[(4, 0)] = dict(fill=r3[0:4])
    H[(4, 1)] = dict(fill=r3[4:8], pre=[I('@lg xr2')])
    H[(5, 0)] = dict(fill=r3[8:12])
    H[(5, 1)] = dict(fill=r3[12:16])
    H[(6, 1)] = dict(pre=[I('@lg xr3')])
    return H


HB = [FR0, 224]

def half_reads(st, k):
    return w_reads(st, 0, HB[k & 1], 'w%d' % st) + w_reads(st, 1, HB[k & 1] + 16, 'w%d' % st)


def half_chunk(tr, ring, s0, aset, fill):
    tr.E(w_reads(s0, 1, HB[0] + 16, 'w%d' % s0))
    for k in range(8):
        st = s0 + k
        sub, kq = k % 2, k // 2
        if st + 1 < ring.n1:
            tr.E('@vm st%d' % (st + 1))
            if k > 0:
                tr.E('@assert_lg_done w%d' % (st - 1))
            tr.E('s_barrier')
            if k > 0:
                ring.release(st - 1)
        mf = []
        for T in range(2):
            for rg in range(2):
                d = v4(acc(aset, sub, T, rg))
                for t in range(4):
                    c = '0' if (kq == 0 and t == 0) else d
                    mf.append(mfma(d, v4(HB[k & 1] + 16 * T + 4 * t), a4(xa(kq * 4 + t, rg)), c))
        reads = half_reads(st + 1, k + 1) if k < 7 else []
        emit_group(tr, mf, reads, ring.take(4), fill, dma_pos=(2, 6, 10, 14))


vWd = [['v20', 'v21', 'v22', 'v23'], ['v24', 'v25', 'v26', 'v27']]
vWoA = ['v28', 'v29', 'v30', 'v31']

def p2_addr():
    o = []
    A = lambda s: o.append(I(s))
    A('v_lshrrev_b32 v28, 2, v1')
    A('v_lshlrev_b32 v28, 7, v28')
    A('v_and_b32 v29, 3, v1')
    A('v_lshl_add_u32 v28, v29, 3, v28')
    A('v_bfe_u32 v29, v1, 3, 2')
    A('v_lshl_add_u32 v28, v29, 5, v28')
    A('v_add_u32 v20, %s, v28' % sW4096)
    A('v_add_u32 v28, %d, v28' % STG)
    for T in range(1, 4):
        A('v_xor_b32 v%d, %d, v20' % (20 + T, 32 * T))
        A('v_xor_b32 v%d, %d, v28' % (28 + T, 32 * T))
    for T in range(4):
        A('v_add_u32 v%d, 0x10000, v%d' % (24 + T, 20 + T))
    return o


def wd_reads(ring, n):
    slot = (ring.n1 + n) % 6
    o = [I('@vm wd%d' % n)]
    for T in range(4):
        for s in range(2):
            o.append(I('ds_read_b64_tr_b16 %s, %s offset:%d' % (a2(16 * n + 4 * T + 2 * s), vWd[slot >= 4][T], (slot & 3) * 16384 + s * 2048), 'wdr%d' % n))
    return o


def wd_refill(ring, n):
    if n + 6 >= 14:
        return []
    return [I('@lg wdr%d' % n)] + flat_dma(dma_items(desc_wd(n + 6), (ring.n1 + n) % 6, 'wd%d' % (n + 6)))


def wo_reg(ks): return 224 + 16 * ks if ks < 2 else 16 * (ks - 2)

def wo_reads(ks):
    return [I('ds_read_b64_tr_b16 %s, %s offset:%d' % (a2(wo_reg(ks) + 4 * T + 2 * s), vWoA[T], ks * 4096 + s * 2048), 'wor')
            for T in range(4) for s in range(2)]


def phase2(tr, ring, nread):
    E = tr.E
    first_free = ring.next - ring.n1
    for n in range(first_free, 6):
        E(flat_dma(dma_items(desc_wd(n), (ring.n1 + n) % 6, 'wd%d' % n)))
    for rho in range(4):
        E('s_xor_b32 %s, %s, %d' % (sH[rho], sW, rho))
        E('s_add_u32 %s, %s, %s' % (sH[rho], sH[rho], sRG0))
        E('s_mul_i32 %s, %s, 72' % (sH[rho], sH[rho]))
        if rho == 0:
            E('s_add_u32 %s, %s, 56' % (sO, sH[0]))
            E('s_lshl_b32 %s, %s, 10' % (sO, sO))
        E('s_add_u32 %s, %s, %s' % (sH[rho], sH[rho], sW))
        E('s_lshl_b32 %s, %s, 10' % (sH[rho], sH[rho]))
    E('v_and_b32 v8, 15, v1')
    E('v_lshlrev_b32 v8, 10, v8')
    E('v_lshrrev_b32 v4, 4, v1')
    E('v_lshl_add_u32 v5, v4, 3, v8')
    E('s_add_u32 %s, %s, %s' % (sU2, sRG0, sW))
    E('s_lshl_b32 %s, %s, 14' % (sU2, sU2))
    E('s_add_u32 %s, %s, %s' % (sU2, sU2, sCB))
    for T in range(4):
        E('buffer_load_dwordx2 %s, v5, %s, %s offen offset:%d' % (v2(48 + 2 * T), srd(S_X), sU2, 32 * T), 'xres')
    E('v_and_b32 v6, 1, v4')
    E('v_lshl_add_u32 v8, v6, 5, v8')
    E('v_lshrrev_b32 v4, 1, v4')
    E('v_lshl_add_u32 v8, v4, 4, v8')
    E('v_add_u32 v4, %s, %s' % (sW4096, vL16))
    for rho in range(1, 4):
        E('v_xor_b32 v%d, %d, v4' % (4 + rho, rho * 4096))
    E('s_lshr_b32 %s, %s, 3' % (sT2, sRG0))
    E('s_mul_i32 %s, %s, 6144' % (sT2, sT2))
    E('s_add_u32 %s, %s, %d' % (sT2, sT2, FLAG_H))
    E('s_sub_u32 %s, 14, %s' % (sHA, sLIM))
    E('s_lshl_b32 %s, %s, 12' % (sHA, sHA))
    E('s_sub_u32 %s, %s, %d' % (sHB, sHA, 14 * 4096))
    E('s_lshr_b32 %s, %s, 17' % (sHN, sWOX))
    E('s_lshl_b32 %s, %s, 12' % (sHN, sHN))
    for n in range(nread, 8):
        E(wd_reads(ring, n))
        if n == 7:
            E(tr.poll_issue(S_KV, sT2, 'hpoll'))
        E(wd_refill(ring, n))
    E(wo_reads(0)); E(wo_reads(1))
    E('@vm hpoll')
    tr.stamp('hp0')
    E(tr.poll_check(S_KV, sT2, 0xffff))
    tr.stamp('hpoll')
    items = [(n, rho) for n in range(14) for rho in range(4)] + [('o', ks) for ks in range(16)]
    def hreg(k): return 128 + 4 * (k % 32)
    def load(k):
        if k >= len(items):
            return None
        a, b = items[k]
        if a == 'o':
            pre = [I('s_xor_b32 %s, %s, %d' % (sT0, sHN, b * 1024)), I('s_add_u32 %s, %s, %s' % (sT0, sT0, sO))]
        else:
            pre = [I('s_cmp_gt_u32 %s, %d' % (sLIM, a)), I('s_cselect_b32 %s, %s, %s' % (sT0, sHA, sHB)),
                   I('s_add_u32 %s, %s, %s' % (sT0, sT0, sH[b])), I('s_add_u32 %s, %s, %d' % (sT0, sT0, a * 4096))]
        return (pre, I('buffer_load_dwordx4 %s, %s, %s, %s offen sc1' % (v4(hreg(k)), vL16, srd(S_HO), sT0), 'h'))
    for k in range(32):
        E(flat_dma([load(k)]))
    for n in range(8, 14):
        E(wd_reads(ring, n))
    tr.stamp('wd')
    YA = 64
    def ya(rho, T): return YA + (rho * 4 + T) * 4
    wo_q = deque()
    for n2 in range(7):
        for rho in range(4):
            mf = []
            for T in range(4):
                for e in range(2):
                    n = 2 * n2 + e
                    d = v4(ya(rho, T))
                    mf.append(mfma(d, a4(16 * n + 4 * T), v4(hreg(n * 4 + rho)), '0' if n == 0 else d))
            prev = (n2, rho - 1) if rho > 0 else (n2 - 1, 3)
            dm = []
            if prev[0] >= 0:
                for e in range(2):
                    it = load((2 * prev[0] + e) * 4 + prev[1] + 32)
                    if it:
                        dm.append(it)
            rd = [wo_q.popleft() for _ in range(min(4, len(wo_q)))]
            emit_group(tr, mf, rd, dm, deque(), dma_pos=(5, 7))
        wo_q.extend(wo_reads(2 * n2 + 2) + wo_reads(2 * n2 + 3))
    tr.stamp('y')
    E(wo_q)
    for rho in range(1, 4):
        for T in range(4):
            E('ds_write_b128 v4, %s offset:%d' % (v4(ya(rho, T)), (rho - 1) * 16384 + T * 1024), 'yw')
    E('@lg yw')
    E('s_barrier')
    for rho in range(1, 4):
        for T in range(4):
            E('ds_read_b128 %s, v%d offset:%d' % (v4(ya(rho, T)), 4 + rho, (rho - 1) * 16384 + T * 1024), 'yr')
    fill = deque()
    F = lambda s: fill.append(I(s))
    for T in range(4):
        for e in range(2):
            F('v_lshlrev_b32 v%d, 16, v%d' % (192 + 4 * T + 2 * e, 48 + 2 * T + e))
            F('v_and_b32 v%d, 0xffff0000, v%d' % (192 + 4 * T + 2 * e + 1, 48 + 2 * T + e))
    for k in range(16):
        F('v_add_f32 v%d, v%d, v%d' % (YA + k, YA + k, YA + 16 + k))
    for k in range(16):
        F('v_add_f32 v%d, v%d, v%d' % (YA + 32 + k, YA + 32 + k, YA + 48 + k))
    for k in range(16):
        F('v_add_f32 v%d, v%d, v%d' % (YA + k, YA + k, YA + 32 + k))
    for k in range(16):
        F('v_mul_f32 v%d, %s, v%d' % (YA + 16 + k, sNL, YA + k))
    for k in range(16):
        F('v_exp_f32 v%d, v%d' % (YA + 16 + k, YA + 16 + k))
    for k in range(16):
        F('v_add_f32 v%d, 1.0, v%d' % (YA + 16 + k, YA + 16 + k))
    for k in range(16):
        F('v_rcp_f32 v%d, v%d' % (YA + 16 + k, YA + 16 + k))
    for k in range(16):
        F('v_mul_f32 v%d, v%d, v%d' % (YA + k, YA + k, YA + 16 + k))
    SA = 32
    for kb in range(4):
        mf = []
        for T in range(4):
            for e in range(4):
                ks = 4 * kb + e
                d = v4(SA + 4 * T)
                mf.append(mfma(d, a4(wo_reg(ks) + 4 * T), v4(hreg(56 + ks)), '0' if ks == 0 else d))
        emit_group(tr, mf, [], [], fill)
    E(fill)
    for k in range(16):
        E('v_fma_f32 v%d, v%d, v%d, v%d' % (SA + k, SA + k, YA + k, 192 + k))
    for k in range(8):
        E('v_cvt_pk_bf16_f32 v%d, v%d, v%d' % (YA + 16 + k, SA + 2 * k, SA + 2 * k + 1))
    for pr in range(2):
        b = YA + 16 + 4 * pr
        E('v_permlane16_swap_b32 v%d, v%d' % (b, b + 2))
        E('v_permlane16_swap_b32 v%d, v%d' % (b + 1, b + 3))
    for pr in range(2):
        E('buffer_store_dwordx4 %s, v8, %s, %s offen offset:%d' % (v4(YA + 16 + 4 * pr), srd(S_OUT), sU2, 64 * pr), 'out')
    if Cfg.stamp:
        E('@vm0')
        tr.stamp('end')
        E('@lgkm0')
        for n in range(max(0, tr.nstamp - NST), tr.nstamp):
            E('v_writelane_b32 v0, s%d, %d' % (STAMP0 + 2 * (n % NST), n))
        E('s_lshl_b32 %s, s2, 10' % sT0)
        E('s_lshl_b32 %s, %s, 8' % (sT1, sW))
        E('s_add_u32 %s, %s, %s' % (sT0, sT0, sT1))
        E('v_lshlrev_b32 v40, 2, v1')
        E('buffer_store_dword v0, v40, %s, %s offen' % (srd(S_ST), sT0), 'st')
    E('s_endpgm')


def publish(tr):
    tr.E('@vm pub')
    tr.E('s_barrier')
    tr.E(signal(S_KV, sMEM, 32))


def gu_stages(col, const):
    out = []
    for kq in range(4):
        out.append(desc_p1(S_WG, vDg, 3584, sKg, kq, col, const))
        out.append(desc_p1(S_WU, vDg, 3584, sKg, kq, col, const))
    return out


def wo_dmas():
    out = deque()
    for n in range(4):
        out.extend(dma_items(desc_wo(n), 6 + n, 'wo'))
    return out


def trace_k():
    tr = Trace('k')
    stages = []
    for kq in range(4):
        stages.append(desc_p1(S_WQKV, vDq, 3072, sKq, kq, sJ128, 1024))
        stages.append(desc_p1(S_WQKV, vDq, 3072, sKq, kq, sJ128, 2048))
    stages += gu_stages(sJ128, 0) + gu_stages(sU2, 1024)
    ring = Ring(stages)
    prologue(tr, False, stages)
    H = first_chunk_hooks()
    H[(6, 0)] = dict(post=flat_dma(wphi_dma()) + tr.poll_issue(S_DBG, '0', 'zpoll'))
    full_chunk(tr, ring, 0, 2, 0, True, lambda: w_reads(8, 0, FR0, 'w8'), hooks=H)
    tr.stamp('c0')
    tr.E(k_epilogue(tr, True))
    tr.stamp('kepi')
    tr.E('@lg phir')
    kvf = [I('s_mul_i32 %s, %s, 12288' % (sT1, sJ)), I('s_lshl_b32 %s, %s, 2' % (sT2, sRB)), I('s_add_u32 %s, %s, %s' % (sT1, sT1, sT2)),
           I('s_add_u32 %s, %s, %d' % (sT1, sT1, FLAG_KV))]
    H = {(Cfg.kvsig, 1): dict(pre=tr.stamp_i('prekv') + [I('@vm kvat')] + tr.stamp_i('kvdone'), post=kvf + signal(S_KV, sT1, 20))}
    full_chunk(tr, ring, 8, 2, 1, False, lambda: w_reads(16, 0, HB[0], 'w16'), hooks=H, extra_dma=wo_dmas())
    tr.stamp('c1')
    tr.E('s_lshl_b32 %s, %s, 4' % (sT2, sJ128))
    tr.E(h_epilogue(1, range(4), 0, sT2, 192))
    half_chunk(tr, ring, 16, 0, deque())
    tr.stamp('c2')
    tr.E(flat_dma(ring.take(99)))
    tr.E('s_lshl_b32 %s, %s, 4' % (sT2, sU2))
    tr.E(h_epilogue(0, range(2), 8 * 2048, sT2, 192))
    tr.E(p2_addr())
    for n in range(3):
        tr.E(wd_reads(ring, n))
    for n in range(3):
        tr.E(wd_refill(ring, n))
    tr.stamp('prepub')
    publish(tr)
    tr.stamp('pub')
    phase2(tr, ring, 3)
    return tr


def trace_q():
    tr = Trace('q')
    stages = gu_stages(sU2, 12 * 128)
    for kq in range(4):
        stages.append(desc_p1(S_WQKV, vDq, 3072, sKq, kq, sJ128, 0))
    stages += gu_stages(sU2, 13 * 128)
    ring = Ring(stages)
    prologue(tr, True, stages)
    H = first_chunk_hooks()
    H[(6, 0)] = dict(post=flat_dma(wphi_dma()) + tr.poll_issue(S_DBG, '0', 'zpoll'))
    full_chunk(tr, ring, 0, 2, 0, False, lambda: w_reads(8, 0, FR0, 'w8'), hooks=H)
    tr.stamp('c0')
    tr.E('s_lshl_b32 %s, %s, 4' % (sT2, sU2))
    fill = deque(h_epilogue(0, range(4), 12 * 2048, sT2, 192))
    full_chunk(tr, ring, 8, 1, 1, False, lambda: w_reads(12, 0, FR0, 'w12'), fill=fill)
    tr.E(fill)
    tr.stamp('c1')
    tr.E('@vm zpoll')
    tr.E(tr.poll_check(S_DBG, '0', 0xff))
    tr.E(q_epilogue(True))
    tr.stamp('qepi')
    tr.E('@lg phir')
    kvoff = [I('s_mul_i32 %s, %s, 12288' % (sT2, sJ)), I('s_add_u32 %s, %s, %d' % (sT2, sT2, FLAG_KV))]
    H = {(6, 0): dict(post=kvoff + tr.poll_issue(S_KV, sT2, 'kvpoll'))}
    full_chunk(tr, ring, 12, 2, 0, False, None, hooks=H, extra_dma=wo_dmas())
    tr.stamp('c2')
    tr.E('@vm kvpoll')
    tr.E(tr.poll_check(S_KV, sT2, 0xffff))
    tr.stamp('kvpoll')
    tr.E(o_loads())
    tr.E(flat_dma(ring.take(99)))
    tr.E('s_lshl_b32 %s, %s, 4' % (sT2, sU2))
    tr.E(h_epilogue(0, range(4), 13 * 2048, sT2, 224))
    tr.E(o_phase())
    tr.E(p2_addr())
    for n in range(3):
        tr.E(wd_reads(ring, n))
    for n in range(3):
        tr.E(wd_refill(ring, n))
    tr.stamp('prepub')
    publish(tr)
    tr.stamp('pub')
    phase2(tr, ring, 3)
    return tr


HEADER = open(__file__.rsplit('/', 1)[0] + '/header.txt').read()


def generate():
    out = [HEADER.rstrip('\n')]
    out.append('; @launch grid=(256,1,1) block=(256,1,1) lds=163840')
    out.append('.amdgcn_target "amdgcn-amd-amdhsa--gfx950"')
    out.append('.text')
    out.append('.globl ' + NAME)
    out.append('.p2align 8')
    out.append('.type %s,@function' % NAME)
    out.append(NAME + ':')
    head = common_head().L
    out.append(text_of(head))
    k, q = trace_k(), trace_q()
    def fin(L, pc):
        L = finish(L)
        return align_runs(L, pc)[0] if Cfg.align else L
    out.append(text_of(fin(k.L, sum(sizes_of(head)))))
    out += k.stubs
    out.append('L_end:\n    s_endpgm')
    out.append('.p2align 6')
    out.append('L_trace_q:')
    out.append(text_of(fin(q.L, 0)))
    out += q.stubs
    out.append('L_code_end:')
    if Cfg.stamp:
        out.append('; STAMPS_K ' + ','.join(k.names))
        out.append('; STAMPS_Q ' + ','.join(q.names))
    out.append('''.section .rodata,"a"
.p2align 6
.amdhsa_kernel %s
  .amdhsa_next_free_vgpr 512
  .amdhsa_next_free_sgpr 102
  .amdhsa_accum_offset 256
  .amdhsa_group_segment_fixed_size 0
  .amdhsa_kernarg_size 88
  .amdhsa_user_sgpr_count 2
  .amdhsa_user_sgpr_kernarg_segment_ptr 1
  .amdhsa_system_sgpr_workgroup_id_x 1
.end_amdhsa_kernel''' % NAME)
    return '\n'.join(out) + '\n'


if __name__ == '__main__':
    for a in sys.argv[2:]:
        k, v = a.split('=')
        setattr(Cfg, k, eval(v))
    open(sys.argv[1], 'w').write(generate())
```

```python
import re

REG_RE = re.compile(r'(?<![\w.])([vas])(?:\[(\d+):(\d+)\]|(\d+))(?![\w])')
TRANS = ('v_exp_f32', 'v_log_f32', 'v_rcp_f32', 'v_rsq_f32', 'v_sqrt_f32')


def regs_of(op):
    out = []
    for m in REG_RE.finditer(op):
        t = m.group(1)
        if m.group(2) is not None:
            out += [(t, i) for i in range(int(m.group(2)), int(m.group(3)) + 1)]
        else:
            out.append((t, int(m.group(4))))
    if re.search(r'\bvcc(_lo|_hi)?\b', op):
        out.append(('s', 'vcc'))
    if re.search(r'\bm0\b', op):
        out.append(('s', 'm0'))
    if re.search(r'\bexec\b', op):
        out.append(('s', 'exec'))
    return out


def split_ops(s):
    ops, depth, cur = [], 0, ''
    for ch in s:
        if ch == '[':
            depth += 1
        if ch == ']':
            depth -= 1
        if ch == ',' and depth == 0:
            ops.append(cur.strip())
            cur = ''
        else:
            cur += ch
    if cur.strip():
        ops.append(cur.strip())
    return ops


class I:
    __slots__ = ('text', 'op', 'kind', 'defs', 'uses', 'tag', 'srcC', 'srcAB', 'dpp', 'arg', 'data', 'cost')

    def __init__(self, text, tag=None):
        self.text = text.strip()
        self.tag = tag
        self.defs, self.uses = [], []
        self.srcC, self.srcAB, self.data = [], [], []
        self.dpp = False
        self.arg = None
        t = self.text
        if t.endswith(':'):
            self.op, self.kind = t, 'label'
            return
        if t.startswith(';'):
            self.op, self.kind = ';', 'mark'
            return
        if t.startswith('@'):
            p = t.split()
            self.op, self.kind = p[0], 'pseudo'
            self.arg = p[1:]
            return
        sp = t.split(None, 1)
        op = sp[0]
        self.op = op
        ops = split_ops(sp[1]) if len(sp) > 1 else []
        R = [regs_of(o) for o in ops]
        flat = lambda L: [r for x in L for r in x]
        if op.startswith('v_mfma'):
            self.kind = 'mfma'
            self.defs = R[0]
            self.srcAB = R[1] + R[2]
            self.srcC = R[3]
            self.uses = self.srcAB + self.srcC
        elif op.startswith('ds_read'):
            self.kind = 'ds_r'
            self.defs, self.uses = R[0], flat(R[1:])
        elif op.startswith('ds_write') or op.startswith('ds_add'):
            self.kind = 'ds_w'
            self.uses = flat(R)
        elif op.startswith('buffer_load') or op.startswith('global_load'):
            if re.search(r'\blds\b', t):
                self.kind = 'vm_dma'
                self.uses = flat(R) + [('s', 'm0')]
            else:
                self.kind = 'vm_ld'
                self.defs, self.uses = R[0], flat(R[1:])
        elif op.startswith('buffer_store') or op.startswith('buffer_atomic'):
            self.kind = 'vm_st'
            self.uses = flat(R)
            self.data = R[0] if ('x4' in op or 'x3' in op) else []
            assert not (op.startswith('buffer_atomic') and re.search(r'\bsc0\b', t))
        elif op.startswith('v_permlane'):
            self.kind = 'valu'
            self.defs = flat(R)
            self.uses = flat(R)
        elif op.startswith('v_cmp'):
            self.kind = 'valu'
            self.defs, self.uses = R[0], flat(R[1:])
        elif op.startswith('v_'):
            base = op.replace('_e32', '').replace('_e64', '').replace('_dpp', '')
            self.kind = 'trans' if base in TRANS else ('dot' if base.startswith('v_dot') else 'valu')
            self.defs, self.uses = R[0], flat(R[1:])
            if base.startswith('v_fmac') or base.startswith('v_dot2c') or '_dpp' in op:
                self.uses = self.uses + R[0]
            if base in ('v_add_co_u32', 'v_addc_co_u32', 'v_sub_co_u32'):
                self.defs = R[0] + R[1]
                self.uses = flat(R[2:])
            self.dpp = '_dpp' in op
        elif op in ('s_waitcnt',):
            self.kind = 'wait'
        elif op == 's_barrier':
            self.kind = 'barrier'
        elif op == 's_nop':
            self.kind = 'nop'
            self.arg = int(ops[0])
        elif op.startswith('s_cbranch') or op in ('s_branch', 's_endpgm', 's_setpc_b64'):
            self.kind = 'branch'
        elif op.startswith('s_load') or op in ('s_memtime', 's_memrealtime'):
            self.kind = 'smem'
            self.defs, self.uses = R[0], flat(R[1:])
        elif op.startswith('s_cmp') or op in ('s_sleep', 's_setprio'):
            self.kind = 'salu'
            self.uses = flat(R)
        elif op.startswith('s_'):
            self.kind = 'salu'
            self.defs, self.uses = R[0], flat(R[1:])
            if 'saveexec' in op:
                self.defs = self.defs + [('s', 'exec')]
        elif op.startswith('.'):
            self.kind = 'directive'
        else:
            raise ValueError('unknown instr: ' + t)

    def is_valu(self):
        return self.kind in ('valu', 'trans', 'dot')

    def is_vm(self):
        return self.kind in ('vm_ld', 'vm_dma', 'vm_st')


LG_SAFE = 112


def insert_waits(L):
    out = []
    lg = []
    vm = []
    smem = set()
    seen_tags = set()
    pend = {'vm': None, 'lg': None}
    now = [0]
    last_mf = [0]
    lgt = []

    def need(kind, n):
        cur = pend[kind]
        pend[kind] = n if cur is None else min(cur, n)

    def flush():
        parts = []
        if pend['vm'] is not None:
            n = min(pend['vm'], 62)
            parts.append('vmcnt(%d)' % n)
            del vm[:max(0, len(vm) - n)]
        if pend['lg'] is not None:
            n = min(pend['lg'], 14)
            young = sum(1 for t in lgt if now[0] - t < LG_SAFE)
            n = min(n, young)
            parts.append('lgkmcnt(%d)' % n)
            del lgt[:max(0, len(lg) - n)]
            del lg[:max(0, len(lg) - n)]
            if n == 0:
                smem.clear()
        pend['vm'] = pend['lg'] = None
        if parts:
            out.append(I('s_waitcnt ' + ' '.join(parts)))

    for ins in L:
        if ins.kind == 'pseudo':
            if ins.op == '@vm':
                for tag in ins.arg:
                    assert tag in seen_tags, 'unknown vm tag ' + tag
                    idx = [k for k, (t, _) in enumerate(vm) if t == tag]
                    if idx:
                        need('vm', len(vm) - 1 - idx[-1])
            elif ins.op == '@vm0':
                if vm:
                    need('vm', 0)
            elif ins.op == '@lgkm0':
                if lg or smem:
                    need('lg', 0)
            elif ins.op == '@lg':
                for tag in ins.arg:
                    idx = [k for k, (t, _) in enumerate(lg) if t == tag]
                    if idx:
                        need('lg', len(lg) - 1 - idx[-1])
            elif ins.op == '@assert_lg_done':
                for tag in ins.arg:
                    rem = lg if pend['lg'] is None else lg[max(0, len(lg) - pend['lg']):]
                    assert not [1 for (t, _) in rem if t == tag], 'LDS ops with tag %s still pending' % tag
            else:
                raise ValueError(ins.text)
            continue
        if ins.kind == 'mark':
            out.append(ins)
            continue
        if ins.kind in ('label', 'directive'):
            flush()
            out.append(ins)
            continue
        touched = set(ins.defs) | set(ins.uses)
        if touched:
            for k in range(len(lg) - 1, -1, -1):
                if lg[k][1] & touched:
                    need('lg', len(lg) - 1 - k)
                    break
            for k in range(len(vm) - 1, -1, -1):
                if vm[k][1] & touched:
                    need('vm', len(vm) - 1 - k)
                    break
            if smem & touched:
                need('lg', 0)
        if pend['lg'] is not None and smem:
            pend['lg'] = 0
        flush()
        out.append(ins)
        if ins.kind == 'mfma':
            now[0] = max(now[0] + 4, last_mf[0] + 16)
            last_mf[0] = now[0]
        else:
            now[0] += 8 if ins.kind == 'trans' or ins.is_vm() else 4
        if ins.kind in ('ds_r', 'ds_w'):
            lg.append((ins.tag, set(ins.defs)))
            lgt.append(now[0] + (64 if ins.kind == 'ds_w' else 0))
        elif ins.is_vm():
            vm.append((ins.tag, set(ins.defs)))
            seen_tags.add(ins.tag)
            assert len(vm) <= 63, 'too many VMEM ops outstanding at: ' + ins.text
        elif ins.kind == 'smem':
            smem |= set(ins.defs)
        elif ins.kind == 'wait':
            raise ValueError('use pseudo waits in traces')
    flush()
    return out


def required_states(p, c):
    n = 0
    pd = set(p.defs)
    cu, cd = set(c.uses), set(c.defs)
    vec = lambda S: {r for r in S if r[0] in 'va'}
    sc = lambda S: {r for r in S if r[0] == 's'}
    if p.is_valu():
        pv, ps = vec(pd), sc(pd)
        if pv & cu:
            if c.dpp:
                n = max(n, 2)
            if c.op.startswith('v_readfirstlane') or c.op.startswith('v_readlane'):
                n = max(n, 1)
            if c.op.startswith('v_permlane'):
                n = max(n, 2)
            if c.kind == 'mfma':
                n = max(n, 2)
            if p.kind == 'trans' and c.kind != 'trans':
                n = max(n, 1)
        if p.kind == 'dot' and pv & (cu | cd):
            if c.op == p.op:
                ops = split_ops(c.text.split(None, 1)[1])
                ab = set(regs_of(ops[1]) + regs_of(ops[2]))
                if pv & ab:
                    n = max(n, 3)
            else:
                n = max(n, 3)
        if ps & cu:
            if c.is_vm():
                n = max(n, 5)
            elif c.is_valu():
                n = max(n, 2)
            elif c.kind == 'salu':
                n = max(n, 1)
    if p.kind == 'salu' and ('s', 'm0') in pd and c.kind == 'vm_dma':
        n = max(n, 1)
    if p.kind == 'vm_st' and p.data and set(p.data) & cd:
        n = max(n, 2)
    if p.kind == 'mfma':
        big = '32x32' in p.op
        if c.kind == 'mfma':
            if pd & set(c.srcAB):
                n = max(n, 12 if big else 8)
            if pd & set(c.srcC):
                if not (list(p.defs) == list(c.srcC) and p.op == c.op):
                    n = max(n, 10 if big else 6)
            elif pd & cd:
                n = max(n, 10 if big else 6)
        elif pd & (cu | cd):
            n = max(n, 12 if big else 8)
        if c.is_valu() and set(p.srcC) & cd:
            n = max(n, 7 if big else 3)
    return n


def insert_nops(L):
    out = []
    for ins in L:
        if ins.kind in ('label', 'directive', 'mark'):
            out.append(ins)
            continue
        dist = 0
        add = 0
        for p in reversed(out):
            if p.kind in ('label', 'directive', 'mark'):
                continue
            r = required_states(p, ins)
            if r > dist:
                add = max(add, r - dist)
            dist += (p.arg + 1) if p.kind == 'nop' else 1
            if dist >= 12:
                break
        if add:
            out.append(I('s_nop %d' % (add - 1)))
        out.append(ins)
    return out


def hoist_waits(L):
    out = []
    for ins in L:
        if ins.kind == 'wait':
            k = len(out) - 1
            nl = nv = 0
            while k >= 0 and len(out) - k <= 4 and out[k].kind in ('valu', 'trans', 'ds_r', 'ds_w', 'vm_ld', 'vm_dma', 'vm_st', 'salu', 'wait', 'mark'):
                nl += out[k].kind in ('ds_r', 'ds_w')
                nv += out[k].is_vm()
                k -= 1
            if k >= 0 and out[k].kind == 'mfma' and k < len(out) - 1 and out[k + 1].kind != 'salu':
                c = dict((m.group(1), int(m.group(2))) for m in re.finditer(r'(\w+)cnt\((\d+)\)', ins.text))
                if 'lgkm' in c:
                    c['lgkm'] -= nl
                if 'vm' in c:
                    c['vm'] -= nv
                if min(c.values()) >= 0:
                    if out[k + 1].kind == 'wait':
                        for m in re.finditer(r'(\w+)cnt\((\d+)\)', out[k + 1].text):
                            c[m.group(1)] = min(c.get(m.group(1), 99), int(m.group(2)))
                        del out[k + 1]
                    out.insert(k + 1, I('s_waitcnt ' + ' '.join('%scnt(%d)' % (x, c[x]) for x in ('vm', 'lgkm') if x in c)))
                    continue
        out.append(ins)
    return out


def finish(L):
    return insert_nops(hoist_waits(insert_waits(L)))


def text_of(L):
    return '\n'.join(('' if i.kind == 'label' else '    ') + i.text for i in L)


import subprocess, tempfile, os
_size_cache = {}

def sizes_of(L):
    todo = sorted({i.text for i in L if i.kind not in ('label', 'directive', 'branch', 'mark') and i.text not in _size_cache and 'L_' not in i.text})
    if todo:
        with tempfile.NamedTemporaryFile('w', suffix='.s', delete=False) as f:
            f.write('\n'.join(todo) + '\n')
        r = subprocess.run(['llvm-mc', '-triple', 'amdgcn-amd-amdhsa', '-mcpu=gfx950', '-show-encoding', f.name],
                           capture_output=True, text=True)
        os.unlink(f.name)
        assert r.returncode == 0, r.stderr
        enc = [l for l in r.stdout.split('\n') if 'encoding:' in l]
        assert len(enc) == len(todo)
        for t, l in zip(todo, enc):
            _size_cache[t] = l.split('encoding: [')[1].count(',') + 1
    out = []
    for i in L:
        if i.kind in ('label', 'directive', 'mark'):
            out.append(0)
        elif i.kind == 'branch':
            out.append(4)
        elif 'L_' in i.text:
            out.append(8)
        else:
            out.append(_size_cache[i.text])
    return out


NOPROMO = ('v_readfirstlane', 'v_cmp', 'v_add_co', 'v_addc_co', 'v_dot2c', 'v_fmac', 'v_accvgpr')

def align_runs(L, pc0):
    sz = sizes_of(L)
    out, pc = [], pc0
    last = None
    n = len(L)
    for k, ins in enumerate(L):
        if sz[k] == 8 and pc % 8 == 4:
            run, mf = 0, False
            j = k
            while j < n and sz[j] != 4 and run < 8:
                if sz[j]:
                    run += 1
                    mf |= L[j].kind == 'mfma'
                j += 1
            p = out[last[0]] if last else None
            if p is not None and last[1] == 4 and p.is_valu() and not p.op.startswith(NOPROMO) and not p.op.endswith('_e32') and last[0] == len(out) - 1:
                q = I(p.text.replace(p.op, p.op + '_e64', 1), p.tag)
                out[last[0]] = q
                pc += 4
            elif run >= 5 and not mf:
                out.append(I('s_nop 0'))
                pc += 4
        out.append(ins)
        if sz[k]:
            last = (len(out) - 1, sz[k])
        pc += sz[k]
    return out, pc


def estimate(L, names, show=0):
    t, lm, prev, out, t0, k = 0, -99, None, [], 0, 1
    nm = 0
    done = []
    pipe = 0
    xbusy = 0
    for idx, i in enumerate(L):
        if i.kind in ('label', 'directive'):
            continue
        if i.kind == 'mark':
            out.append('%s:%d(%d)' % (names[k], t - t0, nm * 16)); t0 = t; k += 1; nm = 0
            continue
        vec = i.is_valu() or i.is_vm() or i.kind in ('ds_r', 'ds_w', 'mfma')
        if vec:
            t = max(t, lm + 8)
        if i.kind == 'mfma':
            t = max(t, lm + 16); lm = t; t += 4; nm += 1
        elif i.kind == 'dot' or i.op.startswith('v_pk_'):
            t = max(t, lm + 32) + 4
        elif i.kind == 'trans':
            t += 8
        elif i.kind in ('ds_r', 'ds_w') or i.is_vm():
            if prev is not None and prev.is_valu():
                t += 8
            if prev is not None and prev.kind == 'ds_r' and i.kind == 'ds_r':
                t += 4
            t = max(t, xbusy)
            big = 'b128' in i.op or 'x4' in i.op
            if i.kind == 'ds_w' or i.kind == 'vm_st':
                xbusy = t + (72 if big else (32 if 'b64' in i.op else 16))
            t += 4 if i.kind == 'ds_r' else (24 if (i.kind in ('ds_w', 'vm_st') and big) else (12 if i.kind == 'ds_w' else 8))
            if not i.is_vm():
                if len([d for d in done if d > t]) >= 15:
                    t = sorted(done)[-15]
                busy = (52 if 'b128' in i.op else 26) if i.kind == 'ds_w' else (16 if 'b128' in i.op else 8)
                pipe = max(pipe, t) + busy
                done.append(pipe + 72)
        elif i.kind == 'nop' and i.text.startswith('s_nop'):
            t += 4 * (i.arg + 1)
        else:
            t += 4
            m = re.search(r'lgkmcnt\((\d+)\)', i.text)
            if m:
                n = int(m.group(1))
                if len(done) > n:
                    tt = done[len(done) - n - 1]
                    if tt > t:
                        if show and tt - t >= show:
                            print('   stall %d in %s at %d: %s | next %s' % (tt - t, names[k] if k < len(names) else '', idx, i.text, L[idx + 1].text))
                        t = tt
                    del done[:len(done) - n]
        prev = i
    return ' '.join(out) + ' total:%d' % t
```

```python
from asmlib import I

LAT_DS, LAT_MFMA, LAT_V2M = 7, 3, 1


class B:
    def __init__(self, x, after=0, lat=None):
        self.ins = [I(y) if isinstance(y, str) else y for y in (x if isinstance(x, (list, tuple)) else [x])]
        self.defs = set(r for i in self.ins for r in i.defs)
        self.uses = set(r for i in self.ins for r in i.uses)
        kinds = [i.kind for i in self.ins]
        self.lds = any(k in ('ds_r', 'ds_w') for k in kinds)
        self.vm = any(k in ('vm_ld', 'vm_dma', 'vm_st') for k in kinds)
        self.fence = any(k in ('pseudo', 'branch', 'label', 'barrier', 'smem') for k in kinds)
        self.mfma = 'mfma' in kinds
        self.mem = self.lds or self.vm
        self.cost = sum(2 if k == 'trans' else 1 for k in kinds if k in ('valu', 'trans', 'dot'))
        real = [k for k in kinds if k not in ('pseudo', 'label')]
        self.nsalu = sum(1 for k in real if k in ('salu', 'branch', 'smem'))
        self.lead = bool(real) and real[0] == 'salu'
        self.pure_salu = bool(real) and self.nsalu == len(real)
        self.heavy = max([0] + [(3 if ('b128' in i.op or 'x4' in i.op) else 0) for i in self.ins if i.kind in ('ds_w', 'vm_st')])
        self.after = after
        self.lat = lat
        self.preds = []
        self.space = 0
        self.at = None


    def slots(self, s_free):
        n = self.cost + self.nsalu + sum(2 if i.is_vm() else (3 if i.kind == 'ds_w' else 1) for i in self.ins if i.is_vm() or i.kind in ('ds_r', 'ds_w'))
        return n - (1 if (s_free and self.lead) else 0)


class Sched:
    def __init__(self, window=110):
        self.q = []
        self.clock = 0
        self.window = window
        self.last_lds = self.last_vm = None
        self.hist = []
        self.forced = 0
        self.block = 0
        self.log = []

    def __len__(self):
        return len(self.q)

    def add(self, items, after=0, front=False, free=False):
        keep = None
        if free:
            keep = (self.last_lds, self.last_vm)
            self.last_lds = self.last_vm = None
        n0 = len(self.q)
        self._add(items, after)
        if front:
            self.q = self.q[n0:] + self.q[:n0]
        if keep:
            self.last_lds, self.last_vm = keep

    def _add(self, items, after=0):
        for x in items:
            b = x if isinstance(x, B) else B(x)
            b.after = max(b.after, after) + self.clock
            for p in self.hist:
                lat = None
                if p.defs & b.uses:
                    if p.lat is not None:
                        lat = p.lat
                    elif p.lds:
                        lat = LAT_DS
                    elif p.mfma:
                        lat = 0 if (b.mfma and set(b.ins[0].srcC) == p.defs and not (p.defs & set(b.ins[0].srcAB))) else LAT_MFMA
                    elif b.mfma:
                        lat = LAT_V2M
                    else:
                        lat = 0
                elif (p.uses & b.defs) or (p.defs & b.defs):
                    lat = 1 if (p.mfma or p.vm) else 0
                if lat is not None:
                    b.preds.append((p, lat))
            if b.lds or b.fence:
                if self.last_lds:
                    b.preds.append((self.last_lds, 0))
            if b.vm or b.fence:
                if self.last_vm:
                    b.preds.append((self.last_vm, self.last_vm.space))
            if b.lds or b.fence:
                self.last_lds = b
            if b.vm or b.fence:
                self.last_vm = b
            self.hist.append(b)
            self.q.append(b)

    def ready(self, b):
        if b.after > self.clock:
            return False
        for p, lat in b.preds:
            if p.at is None or p.at + lat > self.clock:
                return False
        return True

    def _take(self, pred, window=None):
        for k, b in enumerate(self.q[:window or self.window]):
            if pred(b) and self.ready(b):
                del self.q[k]
                b.at = self.clock
                return b
        return None

    def tag_time(self, tag):
        t = [b.at for b in self.hist if any(i.tag == tag for i in b.ins)]
        return None if (not t or None in t) else max(t)

    def heavy_soon(self, n):
        return [b for b in self.q[:self.window] if b.heavy >= 3 and b.after <= self.clock + n and sum(1 for p, _ in b.preds if p.at is None) <= 6]

    def fill_gap(self, emit, emit_pinned, salu, mem, extra=0, mem2=False, closed=False, quiet=9):
        while True:
            b = self._take(lambda b: b.fence and not b.mem and not b.cost and not b.nsalu, 9999)
            if not b:
                break
            emit(b.ins)
        while True:
            slots = 2 + extra
            s_free = True
            if salu:
                emit_pinned(salu)
                n = sum(1 for i in salu if i.kind not in ('pseudo', 'label'))
                slots -= max(0, n - 1)
                s_free = n == 0
            if closed:
                emit_pinned(mem)
                self.clock += 1
                return
            cand = None
            okm = self.clock >= self.block
            if not mem and okm:
                cand = self._take(lambda b: b.mem and b.heavy >= 3 and quiet >= 2, 9999)
                if cand is None:
                    cand = self._take(lambda b: b.mem and b.heavy <= quiet and b.slots(s_free) <= max(slots, 2), 9999)
                if cand is None and s_free:
                    cand = self._take(lambda b: b.mem and b.heavy <= quiet, 9999)
                if cand is not None and cand.heavy:
                    self.block = self.clock + cand.heavy
            if s_free and not (cand and cand.lead):
                b = self._take(lambda b: b.pure_salu, 9999)
                if b:
                    emit(b.ins)
                    slots -= b.nsalu - 1
                if cand or mem or b:
                    s_free = False
            nmem = 0
            if mem:
                emit_pinned(mem)
                slots -= sum(2 if i.is_vm() else 1 for i in mem)
                nmem = len(mem)
            if cand:
                emit(cand.ins)
                slots -= cand.slots(s_free)
                s_free = False
                nmem = 1
            if mem2 and nmem == 1 and self.clock >= self.block:
                b = self._take(lambda b: b.lds and not b.vm and not b.heavy, 9999)
                if b:
                    emit(b.ins)
                    slots -= 2
            first = nmem == 0
            while slots > 0:
                ok = lambda b: not b.mem and not b.mfma and not b.pure_salu
                b = None
                if slots >= 2:
                    b = self._take(lambda b: ok(b) and b.cost == 2 and len(b.ins) == 1)
                if b is None:
                    b = self._take(lambda b: ok(b) and b.slots(s_free) <= slots)
                if b is None and first:
                    b = self._take(ok)
                if b is None:
                    break
                emit(b.ins)
                slots -= b.slots(s_free)
                s_free = False
                first = False
            self.clock += 1
            b = self._take(lambda b: b.mfma)
            if b is None:
                return
            emit(b.ins)
            salu, mem = [], []

    def force(self, b, emit):
        for p, _ in b.preds:
            if p.at is None:
                self.force(p, emit)
        self.q.remove(b)
        b.at = self.clock
        self.forced += 1
        emit(b.ins)

    def require(self, ins, emit):
        if not self.q:
            return
        if ins.kind == 'pseudo':
            tags = set(ins.arg)
            hit = lambda b: any(i.tag in tags for i in b.ins) or (ins.op == '@lgkm0' and b.lds) or (ins.op == '@vm0' and b.vm)
        else:
            d, u = set(ins.defs), set(ins.uses)
            hit = lambda b: (b.defs & (u | d)) or (b.uses & d)
        for b in list(self.q):
            if b.at is None and hit(b):
                n0 = self.forced
                self.force(b, emit)
                self.log.append((self.forced - n0, b.ins[-1].text, ins.text))

    def drain(self, emit):
        while self.q:
            b = self._take(lambda b: True)
            if b is None:
                self.clock += 1
                continue
            emit(b.ins)
            if b.mfma:
                self.clock += 1
            else:
                self._frac = getattr(self, '_frac', 0) + max(1, b.cost)
                if self._frac >= 4:
                    self._frac -= 4
                    self.clock += 1
```

```python
import sys
from collections import deque
from asmlib import I, finish, text_of, align_runs, sizes_of, estimate
from sched import Sched, B

NAME = 'recurrent_scan__linear_kernel_hedgehog__glu_gated_bilinear__prompt_kernel'
HO_SIZE = 128 * 72 * 1024
KV_OFF = HO_SIZE
KV_SIZE = 0x120000
STAMP_OFF = 0xB00000

class Cfg:
    stamp = False
    stampop = 's_memrealtime'
    sleep = 2
    rotx = 3
    rotk = 3
    rotgu = True
    rot2 = True
    r3 = 7
    NR = 6
    align = True
    prefetch_code = True
    kcap = 2
    qcap = 0
    at_space = 0
    at_delay = 32
    st_delay = 32
    D = 14
    pre_st = 4
    wd_lat = 32
    st_lat = 64
    wob = 12
    pl = 8
    ybar = 1
    nxl = (4, 2, 4, 2, 4, 4, 4, 2, 4, 4, 4, 2, 4, 4, 4, 2)
    w0 = 4
    mpf = 2
    lnq = (2, 2, 2, 2, 1, 1, 1, 0, 0, 0, 0, 2, 2, 1, 1)
    nochk = False
    fine = False
    fineln = False
    hx = 2
    dq = 8
    wspan = 12
    pubk = 0
    pubq = 0
    pubo = 0
    hold_o = True
    l2pf = True
    l2list = '[(S_WD, r) for r in (8, 9, 10, 11, 12, 13, 0, 1, 2, 3, 4, 5, 6, 7)]'
    l2step = 24
    l2last = 8
    outsc = ''
    hsc = 'sc1'
    verbose = False

S_X, S_WQKV, S_WG, S_WU, S_WD, S_WO, S_WPHI, S_OUT, S_DBG, S_HO, S_KV, S_ST = 8, 12, 16, 20, 24, 28, 32, 36, 40, 44, 48, 52
def srd(b): return 's[%d:%d]' % (b, b + 3)
sW, sRB, sJ, sIDX, sXCD = 's3', 's4', 's5', 's6', 's7'
sWA, sWB = 's6', 's7'
sR2, sLIM = 's0', 's1'
sW4096, sJ128, sU2, sT0, sT1, sT2, sCB, sRG0 = 's56', 's57', 's58', 's59', 's60', 's61', 's62', 's63'
sH0, sHA, sHB, sR2s = 's64', 's65', 's66', 's67'; sO = 's68'; sHS = ['s70', 's71', 's72', 's73']
sUN = 's75'; sL = 's74'; sNL = 's76'; sONES = 's77'
sMA, sMB, sMC = 's[78:79]', 's[80:81]', 's[82:83]'
sMEM, sCNT, sKVB = 's84', 's85', 's69'
sKg = ['s86', 's87', 's88', 's89']; sKq = ['s90', 's91', 's92', 's93']
sFL, sXO2, sN = 's90', 's91', ['s92', 's93']
STAMP0 = 94
NST = 4
ZOFF, POFF = 0x8000, 0x20000

vL16, vPo, vSW, vSR = 'v2', 'v3', 'v4', ['v6', 'v7']
vW = [['v8', 'v9'], ['v10', 'v11']]
vDq, vDg, vD2 = ['v12', 'v13'], ['v14', 'v15'], ['v16', 'v19']
vP, vL16s, vSig = 'v17', 'v18', 'v5'
vSW1, vSR1 = 'v63', ['v28', 'v29']
FR0 = 32
def v4(b): return 'v[%d:%d]' % (b, b + 3)
def v2(b): return 'v[%d:%d]' % (b, b + 1)
def a4(b): return 'a[%d:%d]' % (b, b + 3)
def a2(b): return 'a[%d:%d]' % (b, b + 1)
def acc(base, T, rg): return base + (T * 4 + rg) * 4
def acch(base, T, rg): return base + (T * 2 + rg) * 4
def xa(t, rg): return (rg >> 1) * 128 + t * 8 + (rg & 1) * 4
def mfma(d, a, b, c): return I('v_mfma_f32_16x16x32_bf16 %s, %s, %s, %s' % (d, a, b, c))
def Rx(b, i): return (128 if i < 4 else 192) + b * 16 + (i & 3) * 4
STG = 98304


class Trace:
    def __init__(self, name):
        self.L = []
        self.name = name
        self.stubs = []
        self.nstamp = 0
        self.names = ['start']
        self.marks = ['start']
        self.S = Sched()
        self.phases = deque()
        self.stores = []
        self.one = 'v223'

    def raw(self, ins):
        self.L += ins
        if any(i.kind == 'vm_st' for i in ins):
            self.stores.append(self.S.clock)

    def drain(self):
        self.S.drain(self.raw)

    def E(self, x, tag=None):
        if isinstance(x, I):
            self.S.require(x, self.raw)
            self.raw([x])
        elif isinstance(x, B):
            self.E(x.ins)
        elif isinstance(x, (list, tuple, deque)):
            for y in x:
                self.E(y)
        else:
            for line in x.strip().split('\n'):
                line = line.split(';')[0].strip()
                if line:
                    self.E(I(line, tag))

    def stamp(self, name=''):
        self.L.append(I('; ' + name))
        self.marks.append(name)
        if not Cfg.stamp:
            return
        n = self.nstamp
        k = STAMP0 + 2 * (n % NST)
        if n >= NST:
            self.E('v_writelane_b32 v0, s%d, %d' % (k, n - NST))
        self.nstamp += 1
        self.names.append(name)
        self.E(Cfg.stampop + ' s[%d:%d]' % (k, k + 1))

    def poll_issue(self, sr, soff, tag):
        return [I('buffer_load_dword %s, %s, %s, %s offen sc1' % (vP, vPo, srd(sr), soff), tag)]

    def poll_check(self, sr, soff, mask, val=1):
        k = len(self.stubs)
        back, retry = 'L_%s_back%d' % (self.name, k), 'L_%s_retry%d' % (self.name, k)
        test = ['v_cmp_gt_u32 vcc, %d, %s' % (val, vP), 's_and_b32 vcc_lo, vcc_lo, 0x%x' % mask]
        self.stubs.append('\n'.join([
            retry + ':',
            '    s_mov_b32 %s, 0x40000' % sCNT,
            retry + '_loop:',
            '    s_sleep %d' % Cfg.sleep,
            '    buffer_load_dword %s, %s, %s, %s offen sc1' % (vP, vPo, srd(sr), soff),
            '    s_waitcnt vmcnt(0)',
            '    ' + test[0], '    s_nop 1', '    ' + test[1],
            '    s_cbranch_scc0 ' + back,
            '    s_sub_u32 %s, %s, 1' % (sCNT, sCNT),
            '    s_cbranch_scc0 %s_loop' % retry,
            '    s_branch ' + back]))
        if Cfg.nochk:
            return [I(test[0]), I(test[1]), I('s_cbranch_scc1 %s' % back), I(back + ':')]
        return [I(test[0]), I(test[1]), I('s_cbranch_scc1 %s' % retry), I(back + ':')]

    def phase(self, kind, tag, post, delay=0, name=None):
        self.phases.append(dict(kind=kind, tag=tag, post=post, delay=delay, name=name))

    def barrier(self, force=False):
        go = []
        for p in list(self.phases):
            t = self.S.tag_time(p['tag'])
            if t is not None and (force or self.S.clock >= t + p['delay']):
                go.append(p)
                self.phases.remove(p)
        for p in go:
            self.E('@%s %s' % (p['kind'], p['tag']))
            if p['name']:
                self.stamp(p['name'])
            if Cfg.verbose:
                print(self.name, 'phase', p['name'], 'at gap', self.S.clock)
        self.E('s_barrier')
        for p in go:
            p['post']()


def signal(sr, soff, t, val=1):
    return [B('v_mov_b32 v%d, %d' % (t, val), lat=1),
            B(I('buffer_store_dword v%d, %s, %s, %s offen sc1' % (t, vSig, srd(sr), soff), 'sig'))]


def dma_items(desc, slot, tag):
    sr, voffs, pitch, base = desc
    items = []
    for pair in range(2):
        pre = [I('s_add_u32 m0, %s, %d' % (sW4096, slot * 16384 + pair * 2048))] + [I(x) for x in base(pair * 16 * pitch)]
        items.append((pre, I('buffer_load_dwordx4 %s, %s, %s offen lds' % (voffs[0], srd(sr), sT0), tag)))
        items.append(([], I('buffer_load_dwordx4 %s, %s, %s offen offset:1024 lds' % (voffs[1], srd(sr), sT0), tag)))
    return items

def flat_dma(items):
    out = []
    for pre, d in items:
        out += pre + [d]
    return out

def desc_p1(sr, voffs, pitch, ktab, kq, col, const):
    return (sr, voffs, pitch, lambda x: ['s_add_u32 %s, %s, %s' % (sT0, ktab[kq], col)] + (['s_add_u32 %s, %s, %d' % (sT0, sT0, const + x)] if const + x else []))

def desc_wd(n):
    def base(x):
        if n >= 6:
            return ['s_xor_b32 %s, %s, %d' % (sT0, sR2, ((n - 6) << 17) + x)]
        return ['s_cmp_gt_u32 %s, %d' % (sLIM, n), 's_cselect_b32 %s, %s, %s' % (sT0, sWA, sWB), 's_add_u32 %s, %s, %d' % (sT0, sT0, ((n + 8) << 17) + x)]
    return (S_WD, vD2, 1024, base)


def desc_wo(n):
    return (S_WO, vD2, 1024, lambda x: ['s_and_b32 %s, %s, 0x7ffff' % (sT0, sR2), 's_xor_b32 %s, %s, %d' % (sT0, sT0, (n << 17) + x)])


def salu_units(pre):
    if any(i.kind == 'branch' for i in pre):
        return [pre]
    units, cur = [], []
    for i in pre:
        cur.append(i)
        if i.kind != 'pseudo' and not i.op.startswith('s_cmp'):
            units.append(cur); cur = []
    if cur:
        units.append(cur)
    return units


def emit_group(tr, mf, reads, dmas, dma_pos=(9, 11, 13, 15), extra=0, mem2=False, close=False, tail_quiet=0, compact=None, squeeze=False):
    n = len(mf)
    if compact is None:
        compact = bool(tr.S.heavy_soon(n // 2))
    mem = [[] for _ in range(n)]
    salu = [[] for _ in range(n)]
    if compact and len(reads) > n // 2:
        dma_pos = (2, 4, 7, 9)
        g = 0
        for r in reads:
            while len(mem[g]) >= (1 if g in dma_pos[:len(dmas)] else 2):
                g += 1
            mem[g].append(r)
    else:
        for k, r in enumerate(reads):
            mem[k].append(r)
        if compact:
            dma_pos = (2, 3, 6, 7) if reads else tuple(range(1, 1 + len(dmas)))
            if len(dmas) <= 2 and reads:
                dma_pos = (3, 6)
    placed = []
    for k, (pre, d) in enumerate(dmas):
        g = dma_pos[k]
        wr = set(r for i in pre for r in i.defs)
        fence = any(i.kind in ('pseudo', 'branch') for i in pre)
        lo = 0
        for g2, d2 in placed:
            if fence or wr & set(d2.uses):
                lo = max(lo, g2 + 1)
        us = salu_units(pre)
        free = [x for x in range(lo, g + 1) if not salu[x]]
        slots = free[-len(us):] if us else []
        while len(slots) < len(us):
            slots = [slots[0] if slots else g] + slots
        for u, x in zip(us, slots):
            salu[x] += u
        mem[g].insert(0, d)
        placed.append((g, d))
    for g in range(n):
        tr.E(mf[g])
        if squeeze and len(mem[g]) == 1 and not mem[g][0].is_vm() and not salu[g]:
            b = tr.S._take(lambda b: b.vm and not b.heavy, 9999)
            if b:
                tr.raw(b.ins)
        q = 0
        while g + 1 + q < n and not mem[g + 1 + q]:
            q += 1
        if g + 1 + q == n:
            q += tail_quiet
        tr.S.fill_gap(tr.raw, tr.E, salu[g], mem[g], extra, mem2, close and g == n - 1, q)


def w_reads(stage, T, buf, tag):
    slot = stage % Cfg.NR
    out = []
    for t in range(4):
        for s in range(2):
            d = buf + 4 * t + 2 * s
            out.append(I('ds_read_b64_tr_b16 %s, %s offset:%d' % (v2(d), vW[T][slot >= 4], (slot & 3) * 16384 + t * 4096 + s * 512), tag))
    return out


XREG = [32768, -1, 0, 32768]

def x_reads(kq):
    out = []
    for rg in range(4):
        for t4 in range(4):
            a, off = (vSR1[t4 & 1], 0) if kq == 1 else (vSR[t4 & 1], XREG[kq])
            out.append(I('ds_read_b128 %s, %s offset:%d' % (a4(xa(kq * 4 + t4, rg)), a, off + rg * 4096 + t4 * 1024), 'xr%d' % kq))
    return out


def x_write(b, i):
    kq = i >> 1
    a, off = (vSW1, 0) if kq == 1 else (vSW, XREG[kq])
    return I('ds_write_b128 %s, %s offset:%d' % (a, v4(Rx(b, i)), off + (b >> 1) * 4096 + (i & 1) * 2048 + (b & 1) * 128), 'xw%d' % kq)


def h_epilogue(gb, ub, rgs, unit_sgpr, unit_const, tag, acc=acc):
    out = [I('s_lshl_b32 %s, %s, 6' % (sUN, unit_sgpr)), I('s_add_u32 %s, %s, %d' % (sUN, sUN, unit_const * 8192))]
    for rg in rgs:
        for T in range(2):
            g, u = acc(gb, T, rg), acc(ub, T, rg)
            for r in range(4):
                out.append(I('v_mul_f32 v%d, v%d, v%d' % (u + r, g + r, u + r)))
    for rg in rgs:
        p = acc(ub, 0, rg)
        for T in range(2):
            u = acc(ub, T, rg)
            out.append(I('v_cvt_pk_bf16_f32 v%d, v%d, v%d' % (p + 2 * T, u, u + 1)))
            out.append(B('v_cvt_pk_bf16_f32 v%d, v%d, v%d' % (p + 2 * T + 1, u + 2, u + 3), lat=1))
        out.append(B([I('s_add_u32 %s, %s, %s' % (sT1, sUN, sHS[rg])),
                      I('buffer_store_dwordx4 %s, %s, %s, %s offen sc1' % (v4(p), vL16s, srd(S_HO), sT1), tag)]))
    return out


def softmax16(p, t, dst_lo, dst_hi):
    o = []
    A = lambda s: o.append(I(s))
    for k in range(5):
        A('v_max3_f32 v%d, v%d, v%d, v%d' % (t + k, p + 3 * k, p + 3 * k + 1, p + 3 * k + 2))
    A('v_max3_f32 v%d, v%d, v%d, v%d' % (t, t, t + 1, t + 2))
    A('v_max3_f32 v%d, v%d, v%d, v%d' % (t + 3, t + 3, t + 4, p + 15))
    A('v_max_f32 v%d, v%d, v%d' % (t, t, t + 3))
    A('v_mul_f32 v%d, %s, v%d' % (t, sNL, t))
    for k in range(16):
        A('v_fma_f32 v%d, v%d, %s, v%d' % (p + k, p + k, sL, t))
        o.append(B('v_exp_f32 v%d, v%d' % (p + k, p + k), lat=1))
        if k == 1:
            A('v_add_f32 v%d, v%d, v%d' % (t + 1, p, p + 1))
        elif k > 1:
            A('v_add_f32 v%d, v%d, v%d' % (t + 1, t + 1, p + k))
    o.append(B('v_rcp_f32 v%d, v%d' % (t + 1, t + 1), lat=1))
    for k in range(8):
        A('v_mul_f32 v%d, v%d, v%d' % (p + 2 * k, p + 2 * k, t + 1))
        A('v_mul_f32 v%d, v%d, v%d' % (p + 2 * k + 1, p + 2 * k + 1, t + 1))
        A('v_cvt_pk_bf16_f32 v%d, v%d, v%d' % ((dst_lo + k) if k < 4 else (dst_hi + k - 4), p + 2 * k, p + 2 * k + 1))
    return o


PHI = 192

def build_phi():
    o = []
    A = lambda s, tag=None: o.append(I(s, tag))
    A('v_lshrrev_b32 v28, 2, v1')
    A('v_lshlrev_b32 v28, 31, v28')
    A('v_lshrrev_b32 v29, 16, v28')
    A('v_or_b32 v28, v28, v29')
    A('s_mov_b32 s78, 0x00ff00ff'); A('s_mov_b32 s79, 0x00ff00ff')
    for t in range(4):
        for e in range(2):
            A('v_xor_b32 v%d, v%d, v28' % (20 + 2 * t + e, 20 + 2 * t + e))
    for t in range(4):
        for e in range(2):
            A('v_cndmask_b32 v%d, 0, v%d, %s' % (PHI + 4 * t + e, 20 + 2 * t + e, sMA))
            A('v_cndmask_b32 v%d, v%d, 0, %s' % (PHI + 4 * t + 2 + e, 20 + 2 * t + e, sMA))
    return o


def features(base, post):
    def fmap(rg):
        o = []
        kf = acc(base, 0, rg)
        p = 224 + 16 * (rg & 1)
        for T in range(2):
            k = acc(base, T, rg)
            o.append(I('v_cvt_pk_bf16_f32 v%d, v%d, v%d' % (kf + 2 * T, k, k + 1)))
            o.append(I('v_cvt_pk_bf16_f32 v%d, v%d, v%d' % (kf + 2 * T + 1, k + 2, k + 3)))
        for t in range(4):
            o.append(mfma(v4(p + 4 * t), v4(PHI + 4 * t), v4(kf), '0'))
        return o
    o = fmap(0)
    for rg in range(4):
        if rg + 1 < 4:
            o += fmap(rg + 1)
        o += softmax16(224 + 16 * (rg & 1), 208 + 5 * (rg & 1), acc(base, 0, rg), acc(base, 1, rg))
        o += post(rg)
    return o


KB, VB = 64, 96

def k_addr():
    o = []
    A = lambda s, tag=None: o.append(I(s, tag))
    A('v_and_b32 v30, 15, v1')
    A('v_lshrrev_b32 v31, 4, v1')
    A('v_lshlrev_b32 v31, 1, v31')
    A('v_and_b32 v29, 7, v1')
    A('v_xor_b32 v31, v31, v29')
    A('v_lshlrev_b32 v31, 4, v31')
    A('v_lshl_add_u32 v30, v30, 7, v31')
    A('v_add_u32 v30, %s, v30' % sW4096)
    A('v_add_u32 v30, %d, v30' % STG)
    A('v_xor_b32 v31, 16, v30')
    return o


def k_part1():
    def post(rg):
        off = (rg >> 1) * 16384 + (rg & 1) * 2048
        return [I('ds_write_b128 v30, %s offset:%d' % (v4(acc(KB, 0, rg)), off), 'phiw'),
                I('ds_write_b128 v31, %s offset:%d' % (v4(acc(KB, 1, rg)), off), 'phiw')]
    return features(KB, post)


def k_partv():
    o = []
    A = lambda s, tag=None: o.append(I(s, tag))
    A('v_add_u32 v29, %s, %s' % (sW4096, vL16))
    A('v_add_u32 v29, %d, v29' % (STG + 32768))
    for T in range(2):
        for kap in range(2):
            d = acc(VB, T, 2 * kap)
            for h in range(2):
                v = acc(VB, T, 2 * kap + h)
                A('v_cvt_pk_bf16_f32 v%d, v%d, v%d' % (d + 2 * h, v, v + 1))
                A('v_cvt_pk_bf16_f32 v%d, v%d, v%d' % (d + 2 * h + 1, v + 2, v + 3))
            A('ds_write_b128 v29, %s offset:%d' % (v4(d), (T * 2 + kap) * 1024), 'phiw')
    return o


def k_addr2():
    o = []
    A = lambda s, tag=None: o.append(I(s, tag))
    A('v_lshrrev_b32 v218, 2, v1')
    A('v_and_b32 v219, 7, v218')
    A('v_bfe_u32 v220, v1, 1, 1')
    A('v_xor_b32 v219, v219, v220')
    A('v_lshlrev_b32 v219, 4, v219')
    A('v_lshl_add_u32 v218, v218, 7, v219')
    A('v_and_b32 v220, 1, v1')
    A('v_lshl_add_u32 v218, v220, 3, v218')
    o += ['s_and_b32 %s, %s, 1' % (sT1, sW), 's_lshl_b32 %s, %s, 12' % (sT1, sT1), 's_add_u32 %s, %s, %d' % (sT1, sT1, STG),
          's_lshr_b32 %s, %s, 1' % (sT2, sW), 's_lshl_b32 %s, %s, 6' % (sT2, sT2), 'v_xor_b32 v218, %s, v218' % sT2]
    A('v_add_u32 v218, %s, v218' % sT1)
    A('v_xor_b32 v219, 32, v218')
    o += ['s_lshl_b32 %s, %s, 5' % (sT2, sT2), 's_add_u32 %s, %s, %s' % (sT1, sT1, sT2), 's_add_u32 %s, %s, 32768' % (sT1, sT1),
          'v_add_u32 v220, %s, %s' % (sT1, vL16)]
    A('v_lshrrev_b32 v222, 5, v1')
    A('v_lshlrev_b32 v222, 24, v222')
    A('v_lshl_add_u32 v222, v1, 2, v222')
    for k in range(4):
        A('v_mov_b32 v%d, %s' % (20 + k, sONES))
    o += ['s_lshl_b32 s80, %s, 4' % sKVB, 's_add_u32 s80, s80, %s' % sRB, 's_lshl_b32 s81, s80, 7', 's_add_u32 s81, s81, %d' % ZOFF,
          's_lshl_b32 s80, s80, 11', 's_add_u32 s80, s80, %d' % POFF,
          's_lshl_b32 s82, %s, 11' % sJ, 's_lshl_b32 s83, %s, 2' % sRB, 's_add_u32 s82, s82, s83', 's_add_u32 s82, s82, 64',
          's_mov_b32 s78, 0xffff0000', 's_mov_b32 s79, 0xffff0000', 'v_mov_b32 v223, 1']
    return o


def k_part2():
    o = []
    A = lambda s, tag=None: o.append(I(s, tag))
    VF = 96
    for c4 in range(4):
        A('ds_read_b128 %s, v220 offset:%d' % (v4(VF + 4 * c4), (c4 >> 1) * 8192 + (c4 & 1) * 1024), 'phir')
    for sg in range(2):
        for c4 in range(4):
            for s in range(2):
                A('ds_read_b64_tr_b16 %s, v%d offset:%d' % (v2(224 + (sg * 4 + c4) * 4 + 2 * s), 218 + sg, (c4 >> 1) * 8192 + (c4 & 1) * 16384 + s * 2048), 'phir')
    for sg in range(2):
        for c4 in range(4):
            o.append(mfma(v4(112 + 4 * sg), v4(224 + (sg * 4 + c4) * 4), v4(VF + 4 * c4), '0' if c4 == 0 else v4(112 + 4 * sg)))
        for c4 in range(4):
            o.append(mfma(v4(120 + 4 * sg), v4(20), v4(224 + (sg * 4 + c4) * 4), '0' if c4 == 0 else v4(120 + 4 * sg)))
    for sg in range(2):
        A('buffer_store_dwordx4 %s, %s, %s, s80 offen offset:%d sc1' % (v4(112 + 4 * sg), vL16, srd(S_KV), sg * 1024), 'kvat')
    o.append(B('v_cndmask_b32 v120, v120, v124, %s' % sMA, lat=1))
    A('buffer_store_dword v120, v222, %s, s81 offen sc1' % srd(S_KV), 'kvat')
    return o


QB = 128
GS = (19 % 6) * 16384

def kv_gather(tr, mid):
    E = tr.E
    E('v_lshlrev_b32 v8, 2, v1')
    E('s_lshl_b32 %s, %s, 11' % (sT1, sKVB))
    E('s_add_u32 %s, %s, %d' % (sT1, sT1, ZOFF))
    E('s_lshl_b32 %s, %s, 15' % (sT2, sKVB))
    E('s_add_u32 %s, %s, %d' % (sT2, sT2, POFF))
    G = lambda k: 192 + 4 * (k % 16)
    def ld(k):
        pre = [I('s_add_u32 %s, %s, 4096' % (sT2, sT2))] if (k and k % 4 == 0) else []
        return pre + [I('buffer_load_dwordx4 %s, %s, %s, %s offen offset:%d sc1' % (v4(G(k) if k > 1 else 32 + 4 * k), vL16, srd(S_KV), sT2, (k % 4) * 1024), 'g')]
    DG = 12
    for k in range(DG):
        E(ld(k))
    mid()
    E('v_and_b32 v9, 15, v1')
    E('v_lshrrev_b32 v10, 4, v1')
    E('v_lshlrev_b32 v11, 3, v10')
    E('v_lshl_add_u32 v9, v9, 5, v11')
    E('s_lshl_b32 s78, %s, 10' % sW)
    E('v_add_u32 v9, s78, v9')
    E('v_and_b32 v11, 31, v1')
    E('s_lshl_b32 s78, %s, 6' % sW)
    E('v_lshl_add_u32 v11, v11, 1, s78')
    E('s_and_b32 s79, %s, 1' % sW)
    E('s_lshl_b32 s78, s79, 11')
    E('v_lshl_add_u32 v14, v1, 5, s78')
    E('s_lshl_b32 s78, s79, 7')
    E('v_lshl_add_u32 v15, v10, 5, s78')
    for k in range(2, 32, 2):
        for e in range(2):
            for h in range(2):
                E('v_pk_add_f32 %s, %s, %s' % (v2(32 + 4 * e + 2 * h), v2(32 + 4 * e + 2 * h), v2(G(k + e) + 2 * h)))
        for e in range(2):
            kk = k + DG - 2 + e
            if kk < 32:
                E(ld(kk))
            elif kk < 40:
                E('buffer_load_dword v%d, v8, %s, %s offen offset:%d sc1' % (40 + kk - 32, srd(S_KV), sT1, (kk - 32) * 256), 'g')
    for sg in range(2):
        for h in range(2):
            E('v_cvt_pk_bf16_f32 v%d, v%d, v%d' % (48 + 2 * sg + h, 32 + 4 * sg + 2 * h, 33 + 4 * sg + 2 * h))
    for sg in range(2):
        E('ds_write_b64 v9, %s offset:%d' % (v2(48 + 2 * sg), GS + sg * 512), 'gw')
    E('v_pk_add_f32 v[40:41], v[40:41], v[42:43]')
    E('v_pk_add_f32 v[44:45], v[44:45], v[46:47]')
    E('v_pk_add_f32 v[40:41], v[40:41], v[44:45]')
    E('v_add_f32 v40, v40, v41')
    E('v_mov_b32 v41, v40')
    E('v_permlane32_swap_b32 v40, v41')
    E('v_add_f32 v40, v40, v41')
    E('v_cvt_pk_bf16_f32 v40, v40, v40')
    E('ds_write_b16 v11, v40 offset:%d' % (GS + 4096), 'gw')
    E('@lg gw')
    E('s_barrier')
    for u in range(2):
        E('ds_read_b128 %s, v14 offset:%d' % (v4(120 + 4 * u), GS + 16 * u), 'gr')
    for u in range(2):
        E('ds_read_b128 %s, v15 offset:%d' % (v4(112 + 4 * u), GS + 4096 + 16 * u), 'gr')


def o_phase():
    o = []
    A = lambda s, tag=None: o.append(I(s, tag))
    A('s_mov_b32 s78, -1'); A('s_mov_b32 s79, 0')
    A('s_mov_b32 s80, 0x11111111'); A('s_mov_b32 s81, 0x22222222')
    A('s_mov_b32 %s, 0x358637bd' % sT2)
    A('s_lshl_b32 %s, %s, 6' % (sUN, sJ128))
    A('s_add_u32 %s, %s, %d' % (sUN, sUN, 56 * 4096))
    for k in range(8):
        A('v_cndmask_b32 v%d, 0, v%d, %s' % (96 + k, 120 + k, sMA))
        A('v_cndmask_b32 v%d, v%d, 0, %s' % (104 + k, 120 + k, sMA))
    for k in range(8):
        A('v_cndmask_b32 v%d, 0, v%d, %s' % (112 + k, 112 + k, sMB))
    res = [160, 172, 32, 44]
    mf, tail = [], []
    for rg in range(4):
        for w, a in ((1, 96), (2, 104), (0, 112)):
            d = res[rg] + 4 * w
            for u in range(2):
                mf.append(mfma(v4(d), v4(a + 4 * u), v4(acc(QB, u, rg)), '0' if u == 0 else v4(d)))
        d = res[rg]
        t = []
        for h in range(2):
            t.append(I('v_add_f32 v%d, %s, v%d' % (d + h, sT2, d + h)))
        for h in range(2):
            t.append(B('v_rcp_f32 v%d, v%d' % (d + h, d + h), lat=1))
        for h in range(2):
            for r in range(4):
                t.append(I('v_mul_f32 v%d, v%d, v%d' % (d + 4 + 4 * h + r, d + 4 + 4 * h + r, d + h)))
        for k in range(4):
            t.append(B('v_cvt_pk_bf16_f32 v%d, v%d, v%d' % (d + k, d + 4 + 2 * k, d + 5 + 2 * k), lat=1))
        t.append(B([I('s_add_u32 %s, %s, %s' % (sT1, sUN, sHS[rg])),
                    I('buffer_store_dwordx4 %s, %s, %s, %s offen sc1' % (v4(d), vL16s, srd(S_HO), sT1), 'pubo')]))
        tail.append(t)
    return o, mf, tail


def build_srd(tr, b, lo, size):
    tr.E('s_mov_b64 s[%d:%d], s[%d:%d]' % (b, b + 1, lo, lo + 1))
    tr.E('s_mov_b32 s%d, 0x%x' % (b + 2, size))
    tr.E('s_mov_b32 s%d, 0x20000' % (b + 3))


def common_head():
    tr = Trace('h')
    E = tr.E
    E('s_cmp_ge_u32 s2, 256')
    E('s_cbranch_scc1 L_end')
    E('s_load_dwordx16 s[64:79], s[0:1], 0')
    E('s_load_dwordx4 s[80:83], s[0:1], 64')
    E('s_load_dwordx2 s[84:85], s[0:1], 80')
    if Cfg.stamp:
        E(Cfg.stampop + ' s[%d:%d]' % (STAMP0, STAMP0 + 1))
    E('s_bitcmp1_b32 s2, 7')
    E('s_cbranch_scc1 L_trace_q')
    return tr


def merge(a, b):
    out, j = [], 0
    for i, x in enumerate(a):
        out.append(x)
        tgt = (i + 1) * len(b) // len(a)
        while j < tgt:
            y = b[j]; j += 1
            out += y if isinstance(y, list) else [y]
    return out


def prologue(tr, isq, stages):
    E = tr.E
    tr.nstamp = 1
    sMU, sKAP, sXB, sXO = sRG0, sU2, 's72', 's73'
    XO = 52
    E('v_and_b32 v1, 63, v0')
    E('v_lshrrev_b32 v20, 6, v0')
    E('v_lshrrev_b32 v23, 3, v1')
    E('v_readfirstlane_b32 %s, v20' % sW)
    E('v_and_b32 v24, 7, v1')
    E('s_and_b32 %s, s2, 7' % sXCD)
    E('s_lshr_b32 %s, s2, 3' % sIDX)
    if Cfg.prefetch_code:
        E('s_getpc_b64 s[90:91]')
        E('L_pc_%s:' % tr.name)
        E('s_lshl_b32 %s, %s, 12' % (sT0, sIDX))
        E('v_lshlrev_b32 v26, 4, v0')
        E('v_add_u32 v26, %s, v26' % sT0)
        E('v_min_u32 v26, L_code_end-%s-16, v26' % NAME)
        E('s_sub_u32 s90, s90, L_pc_%s-%s' % (tr.name, NAME))
        E('s_subb_u32 s91, s91, 0')
        E('v_mov_b32 v27, s91')
        E('v_add_co_u32 v26, vcc, s90, v26')
        E('v_lshlrev_b32 v25, 10, v23')
        E('v_lshl_add_u32 v25, v24, 4, v25')
        E('v_addc_co_u32 v27, vcc, 0, v27, vcc')
        E('global_load_dwordx4 v[80:83], v[26:27], off', 'pf')
    else:
        E('v_lshlrev_b32 v25, 10, v23')
        E('v_lshl_add_u32 v25, v24, 4, v25')
    E('s_lshr_b32 %s, %s, 2' % (sRB, sXCD))
    E('s_lshl_b32 %s, %s, 3' % (sRB, sRB))
    E('s_and_b32 %s, %s, 7' % (sT0, sIDX))
    E('s_add_u32 %s, %s, %s' % (sRB, sRB, sT0))
    E('s_lshr_b32 %s, s2, 6' % sMU)
    E('s_and_b32 %s, %s, %d' % (sMU, sMU, Cfg.rotx))
    E('s_and_b32 %s, %s, %d' % (sKAP, sIDX, Cfg.rotk))
    E('s_lshl_b32 %s, %s, 8' % (sT0, sKAP))
    E('v_add_u32 v%d, %s, v25' % (XO, sT0))
    for i in range(1, 4):
        E('v_xor_b32 v%d, %d, v%d' % (XO + i, 256 * i, XO))
    E('s_bfe_u32 %s, s2, 0x10006' % sT0)
    if isq:
        E('s_mov_b32 %s, %s' % (sT1, sW))
    else:
        E('s_xor_b32 %s, %s, %s' % (sT1, sW, sT0))
    E('s_lshl_b32 %s, %s, 15' % (sT1, sT1))
    E('s_lshl_b32 %s, %s, 17' % (sT2, sRB))
    E('s_add_u32 %s, %s, %s' % (sT2, sT1, sT2))
    E('s_lshl_b32 %s, %s, 13' % (sT1, sMU))
    E('s_add_u32 %s, %s, %s' % (sT2, sT2, sT1))
    E('s_and_b32 %s, %s, 3' % (sJ, sXCD))
    E('s_lshl_b32 %s, %s, 1' % (sJ, sJ))
    E('s_add_u32 %s, %s, %s' % (sJ, sJ, sT0))
    for b, size in ((S_X, 0x200000), (S_WQKV, 512 * 3072)):
        E('s_mov_b32 s%d, 0x%x' % (b + 2, size))
        E('s_mov_b32 s%d, 0x20000' % (b + 3))
    E('v_lshrrev_b32 v21, 4, v1')
    E('s_lshl_b32 %s, %s, 5' % (sT0, sW))
    E('v_add_u32 v27, %s, v23' % sT0)
    E('v_and_b32 v26, 1, v21')
    E('v_lshlrev_b32 v26, 1, v26')
    E('v_xor_b32 v26, v26, v24')
    E('v_lshlrev_b32 v26, 4, v26')
    def voffs(vd, pitch):
        E('s_movk_i32 %s, %d' % (sT0, pitch))
        E('v_mad_u32_u24 %s, v27, %s, v26' % (vd[0], sT0))
        E('v_xor_b32 %s, 64, %s' % (vd[1], vd[0]))
        E('v_add_u32 %s, %d, %s' % (vd[1], 8 * pitch - 1024, vd[1]))
    voffs(vDq, 3072)
    E('s_lshl_b32 %s, %s, 12' % (sW4096, sW))
    E('s_lshl_b32 %s, %s, 7' % (sJ128, sJ))
    E('s_mul_i32 %s, %s, %d' % (sKq[0], sKAP, 128 * 3072))
    tr.L.append(I('s_nop 0'))
    tr.L[-1].text = 's_waitcnt lgkmcnt(0)'
    tr.stamp('karg')
    E('s_mov_b64 s[%d:%d], s[64:65]' % (S_X, S_X + 1))
    E('s_mov_b32 %s, %s' % (sXB, sT2))
    def xload(b, i):
        pre = [I('s_xor_b32 %s, %s, %d' % (sXO, sXB, b << 13))] if (i == 0 and b) else []
        return pre + [I('buffer_load_dwordx4 %s, v%d, %s, %s offen offset:%d' % (v4(Rx(b, i)), XO + (i >> 1), srd(S_X), sXO if b else sXB, 128 * (i & 1)), 'x%d_%d' % (b, i >> 2))]
    for k in range(8):
        E(xload(0, k))
    E('s_mov_b64 s[%d:%d], s[66:67]' % (S_WQKV, S_WQKV + 1))
    E(flat_dma(dma_items(stages[0], 0, 'st0')[:Cfg.w0]))
    build_srd(tr, S_WPHI, 68, 32 * 512)
    E('v_lshlrev_b32 %s, 4, v1' % vL16)
    E('s_lshl_b32 %s, %s, 13' % (sT1, sW))
    E('s_add_u32 %s, %s, %d' % (sT1, sT1, STG))
    E('s_add_u32 s68, %s, 4096' % sT1)
    E('s_lshl_b32 %s, %s, 1' % (sCB, sJ))
    E('s_and_b32 %s, %s, 1' % (sT2, sW))
    E('s_add_u32 %s, %s, %s' % (sCB, sCB, sT2))
    E('s_lshl_b32 %s, %s, 10' % (sCB, sCB))
    wphi = [I('s_mov_b32 m0, s68'), I('buffer_load_dwordx4 %s, %s, %s offen lds' % (vL16, srd(S_WPHI), sCB), 'wphi')]
    E('v_bfe_u32 v61, v1, 1, 1')
    E('v_lshlrev_b32 v61, 9, v61')
    E('v_lshrrev_b32 v62, 2, v1')
    E('v_lshl_add_u32 v61, v62, 5, v61')
    E('v_add_u32 v61, %s, v61' % sT1)
    E('v_lshlrev_b32 %s, 8, v24' % vSW)
    E('v_xor_b32 v25, v23, v24')
    E('v_lshl_add_u32 %s, v25, 4, %s' % (vSW, vSW))
    E('v_add_u32 %s, %s, %s' % (vSW, sT1, vSW))
    E('v_add_u32 %s, 32768, %s' % (vSW1, vSW))
    E('v_subrev_u32 %s, 32768, %s' % (vSW, vSW))
    build_srd(tr, S_WO, 70, 512 * 1024)
    if Cfg.rotgu:
        E('s_bitcmp1_b32 %s, 2' % sIDX)
    else:
        E('s_cmp_eq_u32 0, 1')
    E('s_cselect_b64 s[%d:%d], s[76:77], s[74:75]' % (S_WG, S_WG + 1))
    E('s_cselect_b64 s[%d:%d], s[74:75], s[76:77]' % (S_WU, S_WU + 1))
    for b in (S_WG, S_WU):
        E('s_mov_b32 s%d, 0x%x' % (b + 2, 512 * 3584))
        E('s_mov_b32 s%d, 0x20000' % (b + 3))
    build_srd(tr, S_WD, 78, 1792 * 1024)
    build_srd(tr, S_OUT, 80, 0x200000)
    build_srd(tr, S_DBG, 82, 256)
    build_srd(tr, S_HO, 84, HO_SIZE)
    E('s_add_u32 s%d, s84, 0x%x' % (S_KV, KV_OFF))
    E('s_addc_u32 s%d, s85, 0' % (S_KV + 1))
    E('s_mov_b32 s%d, 0x%x' % (S_KV + 2, KV_SIZE))
    E('s_mov_b32 s%d, 0x20000' % (S_KV + 3))
    if Cfg.stamp:
        E('s_add_u32 s%d, s84, 0x%x' % (S_ST, STAMP_OFF))
        E('s_addc_u32 s%d, s85, 0' % (S_ST + 1))
        E('s_mov_b32 s%d, 0x40000' % (S_ST + 2))
        E('s_mov_b32 s%d, 0x20000' % (S_ST + 3))
    zero = []
    if not isq:
        E('s_cmp_eq_u32 %s, 0' % sRB)
        E('s_cselect_b32 %s, 0, 0x40000000' % sT1)
        E('v_lshlrev_b32 v60, 4, v0')
        E('v_add_u32 v60, %s, v60' % sT1)
        for k in range(4):
            E('v_mov_b32 v%d, 0' % (56 + k))
        E('s_lshl_b32 s83, %s, 12' % sJ)
        for k in range(1):
            zero.append(([I('s_add_u32 s83, s83, 4096')] if k else []) +
                        [I('buffer_store_dwordx4 v[56:59], v60, %s, s83 offen sc1' % srd(S_KV), 'zero')])
    E('v_and_b32 v22, 15, v1')
    E('s_and_b32 %s, %s, 1' % (sT1, sMU))
    E('s_lshl_b32 %s, %s, 7' % (sT1, sT1))
    E('v_xor_b32 %s, %s, %s' % (vL16s, sT1, vL16))
    E('v_lshlrev_b32 %s, 2, v22' % vPo)
    E('v_lshrrev_b32 %s, 4, v0' % vSig)
    E('v_lshlrev_b32 %s, 24, %s' % (vSig, vSig))
    E('v_lshl_add_u32 %s, v22, 7, %s' % (vSig, vSig))
    voffs(vDg, 3584)
    E('v_lshlrev_b32 v25, 1, v21')
    E('v_xor_b32 v25, v25, v24')
    E('v_lshlrev_b32 v25, 4, v25')
    E('v_lshl_add_u32 %s, v27, 10, v25' % vD2[0])
    E('v_add_u32 %s, %d, %s' % (vD2[1], 7168, vD2[0]))
    E('v_xor_b32 v25, v22, v21')
    E('v_lshlrev_b32 v25, 4, v25')
    E('v_lshl_add_u32 %s, v21, 8, v25' % vSR[0])
    E('s_lshr_b32 %s, %s, 1' % (sT0, sW))
    E('s_lshl_b32 %s, %s, 14' % (sT0, sT0))
    E('s_add_u32 %s, %s, %d' % (sT0, sT0, STG - 32768))
    E('v_add_u32 %s, %s, %s' % (vSR[0], sT0, vSR[0]))
    E('v_xor_b32 %s, 64, %s' % (vSR[1], vSR[0]))
    for e in range(2):
        E('v_add_u32 %s, 0x10000, %s' % (vSR1[e], vSR[e]))
    E('v_bfe_u32 v25, v1, 2, 2')
    E('v_lshl_add_u32 v25, v21, 3, v25')
    E('v_lshlrev_b32 v25, 7, v25')
    E('v_and_b32 v26, 3, v1')
    E('v_lshl_add_u32 v25, v26, 3, v25')
    E('v_bfe_u32 v26, v1, 3, 2')
    E('s_and_b32 %s, %s, 1' % (sT0, sW))
    E('s_lshl_b32 %s, %s, 1' % (sT1, sT0))
    E('v_xor_b32 v26, %s, v26' % sT1)
    E('v_lshl_add_u32 %s, v26, 5, v25' % vW[0][0])
    E('v_xor_b32 %s, 32, %s' % (vW[1][0], vW[0][0]))
    E('v_add_u32 %s, 0x10000, %s' % (vW[0][1], vW[0][0]))
    E('v_add_u32 %s, 0x10000, %s' % (vW[1][1], vW[1][0]))
    E('s_mov_b32 %s, 0x3f803f80' % sONES)
    E('s_lshl_b32 %s, s2, 2' % sT0)
    E('s_add_u32 %s, %s, %s' % (sT0, sT0, sW))
    E('s_lshl_b32 %s, %s, 11' % (sT0, sT0))
    E('v_lshlrev_b32 v85, 24, v21')
    E('v_lshl_add_u32 v85, v22, 7, v85')
    E('v_add_u32 v85, %s, v85' % sT0)
    for kq in range(4):
        E('s_xor_b32 %s, %s, %d' % (sT0, sKAP, kq))
        E('s_mul_i32 %s, %s, %d' % (sKg[kq], sT0, 128 * 3584))
        if kq:
            E('s_mul_i32 %s, %s, %d' % (sKq[kq], sT0, 128 * 3072))
    E('s_mov_b32 s64, %s' % sMU)
    sMU = 's64'
    if not isq:
        E('s_lshr_b32 %s, %s, 1' % (sU2, sJ))
        E('s_lshl_b32 %s, %s, 7' % (sU2, sU2))
    late = []
    A = late.append
    A('s_and_b32 s65, %s, 1' % sW)
    A('s_lshl_b32 s66, s65, 12')
    A('s_lshr_b32 %s, %s, 1' % (sT1, sW))
    A('s_lshl_b32 %s, %s, 1' % (sT2, sRB))
    A('s_add_u32 %s, %s, %s' % (sT1, sT1, sT2))
    A('s_mul_i32 %s, %s, 294912' % (sT1, sT1))
    A('s_add_u32 %s, %s, s66' % (sT1, sT1))
    if isq:
        A('s_lshr_b32 %s, %s, 1' % (sT2, sMU))
        A('s_lshl_b32 %s, %s, 10' % (sT2, sT2))
    else:
        A('s_and_b32 %s, %s, 1' % (sT2, sJ))
        A('s_lshl_b32 %s, %s, 11' % (sT2, sT2))
    A('s_add_u32 %s, %s, %s' % (sHS[0], sT1, sT2))
    for rg in range(1, 4):
        A('s_xor_b32 %s, %s, %d' % (sHS[rg], sHS[0], rg << 10))
    A('s_lshl_b32 %s, %s, 2' % (sKVB, sJ))
    if isq:
        A('s_add_u32 %s, %s, %s' % (sKVB, sKVB, sW))
    else:
        A('s_lshl_b32 s65, s65, 1')
        A('s_add_u32 %s, %s, s65' % (sKVB, sKVB))
        A('s_lshr_b32 s65, %s, 1' % sW)
        A('s_add_u32 %s, %s, s65' % (sKVB, sKVB))
    A('s_lshl_b32 %s, %s, 2' % (sT1, sJ))
    A('s_lshl_b32 %s, %s, 11' % (sMEM, sRB))
    A('s_add_u32 %s, %s, %s' % (sMEM, sMEM, sT1))
    if isq:
        A('s_add_u32 %s, %s, 32' % (sMEM, sMEM))
    A('s_and_b32 %s, %s, 3' % (sT1, sIDX))
    A('s_lshr_b32 %s, %s, 2' % (sT2, sIDX))
    A('s_lshl_b32 %s, %s, 7' % (sCB, sT2))
    A('s_lshl_b32 %s, %s, 2' % (sRG0, sT1))
    A('s_lshl_b32 s65, %s, 4' % sXCD)
    A('s_add_u32 %s, %s, s65' % (sRG0, sRG0))
    if Cfg.rot2:
        A('s_add_u32 %s, %s, %s' % (sR2, sT1, sT2))
        A('s_add_u32 %s, %s, %s' % (sT1, sT1, sR2))
        A('s_and_b32 %s, %s, %d' % (sR2, sR2, Cfg.r3))
        A('s_and_b32 %s, %s, 7' % (sT1, sT1))
        A('s_mul_i32 %s, %s, 3' % (sT1, sT1))
        A('s_lshr_b32 %s, %s, 2' % (sWA, sT1))
    else:
        A('s_mov_b32 %s, 0' % sR2)
        A('s_mov_b32 %s, 0' % sWA)
    A('s_sub_u32 %s, 6, %s' % (sLIM, sWA))
    A('s_lshl_b32 %s, %s, 17' % (sWA, sWA))
    A('s_add_u32 %s, %s, %s' % (sWA, sWA, sCB))
    A('s_sub_u32 %s, %s, %d' % (sWB, sWA, 6 << 17))
    A('s_lshl_b32 %s, %s, 17' % (sR2, sR2))
    A('s_add_u32 %s, %s, %s' % (sR2, sR2, sCB))
    A('s_mov_b32 s74, 0x3fb8aa3b')
    A('s_mov_b32 %s, 0xbfb8aa3b' % sNL)
    tr.late = late
    sINV, sEPS = 's81', 's82'
    E('s_mov_b32 %s, 0x3b000000' % sINV)
    E('s_mov_b32 %s, 0x3727c5ac' % sEPS)
    tr.stamp('setup')
    S = lambda b: 36 + 8 * (b & 1)
    def stats(b, half):
        o = []
        for i in range(4 * half, 4 * half + 4):
            for e in range(4):
                r = Rx(b, i) + e
                first = i == 0 and e == 0
                o.append(I('v_dot2_f32_bf16 v%d, v%d, %s, %s' % (S(b), r, sONES, '0' if first else 'v%d' % S(b))))
                o.append(I('v_dot2_f32_bf16 v%d, v%d, v%d, %s' % (S(b) + 1, r, r, '0' if first else 'v%d' % (S(b) + 1))))
        return o
    def red(b):
        o = []
        A = lambda x: o.append(I(x))
        z = S(b)
        for ctl in ('quad_perm:[1,0,3,2]', 'quad_perm:[2,3,0,1]', 'row_half_mirror'):
            for k in range(2):
                A('v_add_f32_dpp v%d, v%d, v%d %s row_mask:0xf bank_mask:0xf' % (z + k, z + k, z + k, ctl))
        A('v_mul_f32 v%d, %s, v%d' % (z + 2, sINV, z))
        A('v_mul_f32 v%d, v%d, v%d' % (z + 3, z + 2, z + 2))
        A('v_fma_f32 v%d, v%d, %s, -v%d' % (z + 3, z + 1, sINV, z + 3))
        A('v_max_f32 v%d, 0, v%d' % (z + 3, z + 3))
        A('v_add_f32 v%d, %s, v%d' % (z + 3, sEPS, z + 3))
        A('v_rsq_f32 v%d, v%d' % (z + 3, z + 3))
        A('v_cvt_pk_bf16_f32 v%d, v%d, 0' % (z + 4, z + 3))
        A('v_lshlrev_b32 v%d, 16, v%d' % (z + 5, z + 4))
        A('v_mul_f32 v%d, -v%d, v%d' % (z + 6, z + 2, z + 5))
        return o
    def norm(b, i0, i1):
        o = []
        z = S(b)
        for i in range(i0, i1):
            t = 64 + 8 * (i & 1)
            for e in range(4):
                r = Rx(b, i) + e
                o.append(I('v_dot2_f32_bf16 v%d, v%d, v%d, v%d' % (t + 2 * e, r, z + 4, z + 6)))
                o.append(I('v_dot2_f32_bf16 v%d, v%d, v%d, v%d' % (t + 2 * e + 1, r, z + 5, z + 6)))
            for e in range(4):
                o.append(I('v_cvt_pk_bf16_f32 v%d, v%d, v%d' % (Rx(b, i) + e, t + 2 * e, t + 2 * e + 1)))
        return o
    vq = deque(xload(k >> 3, k & 7) for k in range(8, 32))
    def mpf(sr):
        i = I('buffer_load_dword v17, v85, %s, 0 offen' % srd(sr), 'mpf')
        i.defs = []
        return [i]
    stq = lambda st, k0=0: [pre + [d] for pre, d in dma_items(stages[st], st, 'st%d' % st)[k0:]]
    vq.append(wphi)
    vq.extend(stq(0, Cfg.w0) + stq(1) + stq(2))
    if Cfg.mpf & 1:
        vq.extend([mpf(S_WQKV), mpf(S_WG), mpf(S_WU)])
    vq.extend(stq(3))
    if Cfg.mpf & 2:
        vq.extend([mpf(S_WO), mpf(S_WD)])
    vq.extend(zero)
    take = lambda k: [vq.popleft() for _ in range(min(k, len(vq)))]
    def stats_all(b, n0, n1):
        for h, n in ((0, n0), (1, n1)):
            if Cfg.fineln: tr.stamp('pre')
            E('@vm x%d_%d' % (b, h))
            if Cfg.fineln: tr.stamp('w%d%d' % (b, h))
            E(take(n))
            if Cfg.fineln: tr.stamp('iss')
            E(stats(b, h))
    def norm_all(b, ns, mix=None):
        parts = [norm(b, i, i + 1) for i in range(8)]
        if mix:
            for k in range(4):
                parts[k] = merge(parts[k], mix[4 * k:4 * k + 4])
        for k in range(8):
            E(parts[k])
            if k % 2 == 0:
                E(take(ns[k // 2]))
            if k < 6:
                E(x_write(b, k))
    nz = len(zero)
    stats_all(0, 4, 4)
    E(red(0))
    norm_all(0, (3, 3, 3, 3))
    tr.stamp('n0')
    stats_all(1, 2, 3)
    E(red(1))
    q = list(Cfg.lnq)
    norm_all(1, q[0:4])
    stats_all(2, q[4], q[5])
    E(red(2))
    stats_all(3, q[6], q[7])
    E('@vm wphi')
    for t in range(4):
        E('ds_read_b64_tr_b16 %s, v61 offset:%d' % (v2(20 + 2 * t), 4096 + t * 8), 'wphir')
    norm_all(2, q[8:12], red(3))
    norm_all(3, q[12:15] + [99])
    tr.stamp('ln')
    E('@vm st0')
    E('@lgkm0')
    E('s_barrier')
    tr.stamp('b0')
    xr = x_reads(0)
    wr = w_reads(0, 0, FR0, 'w0')
    for t in range(4):
        E([xr[t], wr[2 * t], wr[2 * t + 1]])
    E(xr[4:])
    if not isq:
        tr.S.add(['s_lshl_b32 s67, %s, 2' % sJ, 's_lshl_b32 s68, %s, 12' % sRB,
                  'v_lshl_add_u32 v30, %s, 2, s68' % vSig, B('v_mov_b32 v31, 1', lat=1)])
        tr.ready = I('buffer_store_dword v31, v30, %s, s67 offen sc1' % srd(S_DBG), 'sig')
    tr.S.add(tr.late)


class Ring:
    def __init__(self, stages):
        self.stages = stages
        self.n1 = len(stages)
        self.next = Cfg.NR
        self.pending = deque()
        self.free = deque()

    def release(self, stage):
        s = stage + Cfg.NR
        assert s == self.next, (s, self.next)
        self.next += 1
        if s < self.n1:
            self.pending.extend(dma_items(self.stages[s], s % Cfg.NR, 'st%d' % s))
        else:
            self.free.append(s % Cfg.NR)

    def release_upto(self, stage):
        while self.next - Cfg.NR <= stage:
            self.release(self.next - Cfg.NR)

    def take(self, k):
        out = []
        while self.pending and len(out) < k:
            out.append(self.pending.popleft())
        return out


class W2:
    def __init__(self, tr, ring, order):
        self.tr, self.ring = tr, ring
        self.blk = order
        self.next_dma = 0
        self.next_read = 0
        self.slot = {}
        self.issued_at = {}
        self.read_at = {}
        self.wo = deque()
        self.q = deque()
        self.xfree = 0

    def wd_reg(self, n): return 16 * self.blk[n]
    def wo_reg(self, ks): return 16 * (self.blk[14 + ks] if ks < 2 else self.blk[ks - 2])

    def enable_wo(self, ns):
        for n in ns:
            self.wo.extend(dma_items(desc_wo(n), 6 + n, 'wo'))

    def start_stage(self, slack=8):
        if self.q or self.next_dma >= 14 or not self.ring.free:
            return False
        slot = self.ring.free[0]
        rd = self.read_at.get(slot)
        if rd is not None and (rd[1].at is None or rd[1].at + slack > self.tr.S.clock):
            return False
        self.ring.free.popleft()
        n = self.next_dma
        self.next_dma += 1
        self.slot[n] = slot
        it = dma_items(desc_wd(n), slot, 'wd%d' % n)
        if rd is not None:
            it[0] = ([I('@lg wdr%d' % rd[0])] + it[0][0], it[0][1])
        self.q.extend((n, x) for x in it)
        return True

    def pair(self):
        out = []
        for _ in range(2):
            n, x = self.q.popleft()
            out.append(x)
        if not self.q:
            self.issued_at[n] = self.tr.S.clock + 16
        return out

    def dmas(self, k):
        out = []
        while len(out) + 2 <= k:
            if not (self.wo and self.next_dma >= 6):
                self.start_stage()
            if self.q:
                out += self.pair()
            elif self.wo:
                out += [self.wo.popleft(), self.wo.popleft()]
            else:
                break
        return out

    def reads_of(self, n):
        slot = self.slot[n]
        o = [B('@vm wd%d' % n)]
        for T in range(4):
            for s in range(2):
                o.append(B(I('ds_read_b64_tr_b16 %s, %s offset:%d' % (a2(self.wd_reg(n) + 4 * T + 2 * s), vWd[slot >= 4][T], (slot & 3) * 16384 + s * 2048), 'wdr%d' % n)))
        self.read_at[slot] = (n, o[-1])
        self.ring.free.append(slot)
        self.next_read = n + 1
        return o

    def pump(self, lat):
        while self.next_read in self.issued_at and self.next_read < self.xfree and self.issued_at[self.next_read] + lat <= self.tr.S.clock:
            t = self.issued_at[self.next_read]
            if any(s <= t and s + Cfg.st_lat > self.tr.S.clock for s in self.tr.stores):
                break
            self.tr.S.add(self.reads_of(self.next_read), free=True)

    def wo_reads(self, ks):
        return [I('ds_read_b64_tr_b16 %s, %s offset:%d' % (a2(self.wo_reg(ks) + 4 * T + 2 * s), vWoA[T], ks * 4096 + s * 2048), 'wor')
                for T in range(4) for s in range(2)]


def run_stages(tr, ring, s0, plan, next_first, hooks=None, w2=None, caps=None, nx=None, close_last=False):
    hooks = hooks or {}
    nst = len(plan)
    for k in range(nst):
        st = s0 + k
        base, kq, swap = plan[k]
        for T in range(2):
            h = hooks.get((k, T), {})
            buf = FR0 + 16 * T
            if T == 1 and st + 1 < ring.n1:
                tr.E('@vm st%d' % (st + 1))
                tr.E('@lg w%d' % st)
                if 'pre' in h:
                    tr.E(h['pre'])
                tr.barrier()
                ring.release_upto(st)
                if Cfg.fine:
                    tr.stamp('B%d' % (st + 1))
            if 'post' in h:
                h['post']()
            mf = []
            for rg in range(4):
                d = v4(acc(base, T, rg))
                for t in range(4):
                    w, x = v4(buf + 4 * t), a4(xa(kq * 4 + t, rg))
                    c = '0' if (kq == 0 and t == 0) else d
                    mf.append(mfma(d, x, w, c) if swap else mfma(d, w, x, c))
            if T == 0:
                reads = w_reads(st, 1, FR0 + 16, 'w%d' % st)
            elif k + 1 < nst:
                reads = w_reads(st + 1, 0, FR0, 'w%d' % (st + 1))
            else:
                reads = next_first() if next_first else []
            dm = ring.take(4 if len(ring.pending) > 4 else 2)
            if w2:
                w2.pump(Cfg.wd_lat)
                dm += w2.dmas(max(0, nx(k, T) - len(dm)))
            close = (T == 0 and st + 1 < ring.n1) or (k == nst - 1 and T == 1 and close_last)
            pos = (8, 10, 12, 14) if len(dm) > 2 else (10, 12)
            emit_group(tr, mf, reads, dm, dma_pos=pos, extra=caps() if caps else 0, close=close, mem2=h.get('mem2', False) or any(i.tag == 'phir' for b in tr.S.q for i in b.ins))


def l2_prefetch():
    o = ['s_lshr_b32 s93, s2, 3', 's_lshl_b32 s93, s93, 2', 's_add_u32 s93, s93, %s' % sW, 's_lshl_b32 s93, s93, 10']
    for k, (sr, r) in enumerate(eval(Cfg.l2list)):
        b = B([I('s_add_u32 s92, s93, %d' % (r << 17)), I('buffer_load_dword v13, %s, %s, s92 offen' % (vL16, srd(sr)), 'l2')],
              after=Cfg.l2step * k)
        b.ins[1].defs = []
        o.append(b)
    return o


def first_hooks(tr, ring, stages):
    S = tr.S
    H = {}
    wr = [x_write(b, 6 + e) for b in range(4) for e in range(2)]
    def late_stages():
        for s in (5, 4):
            if s < Cfg.NR:
                ring.pending.extendleft(reversed(dma_items(stages[s], s, 'st%d' % s)))
            else:
                ring.free.appendleft(s)
    H[(0, 0)] = dict(post=lambda: S.add(x_reads(1) + x_reads(2)), mem2=True)
    H[(0, 1)] = dict(pre=['@lg xr0'], post=lambda: S.add(wr, free=True), mem2=True)
    H[(1, 0)] = dict(mem2=True)
    H[(1, 1)] = dict(pre=['@lg xr1 xr2'], post=late_stages)
    isk = tr.name == 'k'
    H[(2, 1)] = dict(pre=['@lg xw3'], post=lambda: S.add(x_reads(3) + build_phi()))
    H[(7, 0)] = dict(post=lambda: S.add(tr.poll_issue(S_DBG, '0', 'zpoll'), free=True))
    H[(3, 1)] = dict(pre=['@vm zero'] if isk else [], post=lambda: S.add(([tr.ready] if isk else []) + (l2_prefetch() if Cfg.l2pf else []), free=True), mem2=True)
    H[(4, 1)] = dict(pre=['@lg xr3'])
    return H


def half_chunk(tr, ring, s0, bases, hb, caps, hooks):
    rd = lambda st, k: w_reads(st, 0, hb[k & 1], 'w%d' % st) + w_reads(st, 1, hb[k & 1] + 16, 'w%d' % st)
    tr.E(w_reads(s0, 1, hb[0] + 16, 'w%d' % s0))
    for k in range(8):
        st = s0 + k
        sub, kq = k % 2, k // 2
        tr.E('@vm st%d' % (st + 1))
        if k > 0:
            tr.E('@assert_lg_done w%d' % (st - 1))
        tr.barrier()
        ring.release_upto(st - 1)
        if Cfg.fine:
            tr.stamp('B%d' % (st + 1))
        if k in hooks:
            hooks[k]()
        mf = []
        for T in range(2):
            for rg in range(2):
                d = v4(acch(bases[sub], T, rg))
                for t in range(4):
                    c = '0' if (kq == 0 and t == 0) else d
                    mf.append(mfma(d, v4(hb[k & 1] + 16 * T + 4 * t), a4(xa(kq * 4 + t, rg)), c))
        reads = rd(st + 1, k + 1) if k < 7 else w_reads(st + 1, 0, FR0, 'w%d' % (st + 1))
        dm = ring.take(4)
        emit_group(tr, mf, reads, dm, dma_pos=(3, 5, 10, 12) if k < 7 else (8, 10, 12, 14), close=k < 7, extra=caps(),
                   mem2=any(i.tag == 'phir' for b in tr.S.q for i in b.ins), squeeze=True)


vWd = [['v20', 'v21', 'v22', 'v23'], ['v24', 'v25', 'v26', 'v27']]
vWoA = ['v28', 'v29', 'v30', 'v31']
vH = ['v4', 'v6', 'v7', 'v12']

def p2_addr():
    o = []
    A = lambda s: o.append(I(s))
    A('v_lshrrev_b32 v28, 2, v1')
    A('v_lshlrev_b32 v28, 7, v28')
    A('v_and_b32 v29, 3, v1')
    A('v_lshl_add_u32 v28, v29, 3, v28')
    A('v_bfe_u32 v29, v1, 3, 2')
    A('v_lshl_add_u32 v28, v29, 5, v28')
    A('v_add_u32 v20, %s, v28' % sW4096)
    A('v_add_u32 v28, %d, v28' % STG)
    for T in range(1, 4):
        A('v_xor_b32 v%d, %d, v20' % (20 + T, 32 * T))
        A('v_xor_b32 v%d, %d, v28' % (28 + T, 32 * T))
    for T in range(4):
        A('v_add_u32 v%d, 0x10000, v%d' % (24 + T, 20 + T))
    A('s_lshl_b32 %s, %s, 10' % (sO, sW))
    A('v_add_u32 %s, %s, %s' % (vH[0], sO, vL16))
    for rho in range(1, 4):
        A('v_xor_b32 %s, %d, %s' % (vH[rho], rho << 10, vH[0]))
    A('s_lshr_b32 %s, %s, 2' % (sO, sRG0))
    A('s_mul_i32 %s, %s, 294912' % (sO, sO))
    A('s_add_u32 %s, %s, %s' % (sH0, sO, sW4096))
    A('s_add_u32 %s, %s, %d' % (sO, sO, 56 * 4096))
    A('s_lshr_b32 %s, %s, 17' % (sR2s, sR2))
    A('s_lshl_b32 %s, %s, 14' % (sR2s, sR2s))
    A('s_lshr_b32 %s, %s, 17' % (sHA, sWA))
    A('s_lshl_b32 %s, %s, 14' % (sHA, sHA))
    A('s_add_u32 %s, %s, %s' % (sHA, sHA, sH0))
    A('s_sub_u32 %s, %s, %d' % (sHB, sHA, 6 << 14))
    A('s_lshl_b32 %s, %s, 8' % (sFL, sRG0))
    A('s_add_u32 %s, %s, %s' % (sFL, sFL, sCB))
    A('s_add_u32 %s, %s, %s' % (sXO2, sRG0, sW))
    A('s_lshl_b32 %s, %s, 14' % (sXO2, sXO2))
    A('s_add_u32 %s, %s, %s' % (sXO2, sXO2, sCB))
    return o


NH = 16
RORD = (1, 2, 3, 0)

def phase2(tr, ring, w2, isq):
    E, S = tr.E, tr.S
    D = Cfg.D
    QM, KM = 0xff00, 0x00ff
    if Cfg.verbose:
        print(tr.name, 'P1 end: wd dma', w2.next_dma, 'read', w2.next_read, 'wo left', len(w2.wo), 'gap', S.clock, 'queue', len(S))
    items = []
    for n2 in range(7):
        for rho in RORD:
            items += [(2 * n2, rho), (2 * n2 + 1, rho)]
    items += [('o', ks) for ks in range(16)]
    hreg = lambda k: 192 + 4 * (k % NH)
    checks = {0: (0xffff, 1), 24: (0xffff, 2), 56: (QM, 3)}
    def load(k):
        a, b = items[k]
        pre = []
        if k in checks:
            pre += [I('@vm hp%d' % k)] + tr.poll_check(S_KV, sFL, *checks[k])
        if a == 'o':
            t = sN[b & 1]
            pre += [I('s_xor_b32 %s, %s, %d' % (t, sLIM, b << 12)), I('s_add_u32 %s, %s, %s' % (t, t, sO))]
            if b == 0:
                pre = pre[:-2] + [I('s_and_b32 %s, %s, 0xffff' % (sLIM, sR2s))] + pre[-2:]
            return (pre, I('buffer_load_dwordx4 %s, %s, %s, %s offen %s' % (v4(hreg(k)), vH[0], srd(S_HO), t, Cfg.hsc), 'h'))
        t = sN[a & 1]
        if b == RORD[0]:
            if a >= 6:
                pre += [I('s_xor_b32 %s, %s, %d' % (t, sR2s, (a - 6) << 14)), I('s_add_u32 %s, %s, %s' % (t, t, sH0))]
            else:
                pre += [I('s_cmp_gt_u32 %s, %d' % (sLIM, a)), I('s_cselect_b32 %s, %s, %s' % (t, sHA, sHB)), I('s_add_u32 %s, %s, %d' % (t, t, (a + 8) << 14))]
        return (pre, I('buffer_load_dwordx4 %s, %s, %s, %s offen %s' % (v4(hreg(k)), vH[b], srd(S_HO), t, Cfg.hsc), 'h'))
    RD = 2
    rd_blk = lambda n: 4 * (n // 2) - RD - (0 if n & 1 else 1)
    wops = [('wd', w2.next_dma - 1)] * (len(w2.q) // 2)
    rest = [('wd', n) for n in range(w2.next_dma, 14) for _ in range(2)]
    wops += [o for o in rest if o[1] < 6] + [('wo', k) for k in range(len(w2.wo) // 2)] + [o for o in rest if o[1] >= 6]
    ops = []
    for k, o in enumerate(wops):
        need = (k + 1) * Cfg.wspan / max(1, len(wops)) - 0.6
        if isq and k < 8:
            need = -0.9 + 0.01 * k
        if o[0] == 'wd':
            need = min(need, rd_blk(o[1]) - 0.5)
        ops.append((need,) + o)
    WOB = int(max([0] + [o[0] + 1 for o in ops if o[1] == 'wo']))
    wd_blk = {}
    for o in ops:
        if o[1] == 'wd':
            wd_blk[o[2]] = o[0] + 0.5
    for k in range(72):
        ops.append((k // 2 if k < 56 else 28 + 2 * ((k - 56) // 4), 'h', k))
    ops.append((26.4, 'x', 0))
    ops.sort(key=lambda x: x[0])
    wt = lambda o: 1 if o[1] in ('h', 'p') else 2
    for c in (24, 56):
        i = [k for k, o in enumerate(ops) if o[1:] == ('h', c)][0]
        j, acc_w = i, 0
        while j > 1 and acc_w < Cfg.pl:
            j -= 1; acc_w += wt(ops[j])
        ops.insert(j, (ops[j][0], 'p', c))
    st = dict(i=0, base=0)
    def issue(blk, maxn, depth, lim=24):
        out = []
        while st['i'] < len(ops):
            infl = sum(wt(o) for o in ops[st['base']:st['i']] if o[0] > blk)
            o = ops[st['i']]
            if len(out) + wt(o) > maxn or (infl + wt(o) > depth and o[0] > blk + 1):
                break
            if o[1] == 'h':
                if o[2] - NH >= st['used'] or o[2] >= lim:
                    break
                out.append(load(o[2]))
            elif o[1] == 'p':
                out.append(([], tr.poll_issue(S_KV, sFL, 'hp%d' % o[2])[0]))
            elif o[1] == 'wd':
                if not w2.q and not w2.start_stage(4):
                    break
                out += w2.pair()
            elif o[1] == 'wo':
                out += [w2.wo.popleft(), w2.wo.popleft()]
            elif o[1] == 'x':
                if w2.next_read < 14 or S.tag_time('wdr13') is None:
                    break
                out.append(([I('@lg wdr13'), I('s_add_u32 m0, %s, %d' % (sW4096, 3 * 16384))],
                            I('buffer_load_dwordx4 v8, %s, %s offen lds' % (srd(S_X), sXO2), 'xres')))
                out.append(([I('s_add_u32 %s, %s, 7168' % (sT0, sXO2))],
                            I('buffer_load_dwordx4 v8, %s, %s offen offset:1024 lds' % (srd(S_X), sT0), 'xres')))
            st['i'] += 1
        return out
    def reads_due(blk):
        while w2.next_read < 14 and w2.next_read in w2.issued_at and wd_blk.get(w2.next_read, -9) <= blk:
            S.add(w2.reads_of(w2.next_read), free=True)
    POS = {0: (), 1: (3,), 2: (2, 5), 3: (1, 3, 6), 4: (1, 2, 4, 6), 5: (1, 2, 3, 5, 7)}
    st['used'] = 0
    w2.xfree = 14
    tr.drain()
    tr.stamp('hepi')
    w2.pump(Cfg.wd_lat)
    tr.drain()
    S.clock += 8
    if isq:
        E(flat_dma(issue(-1, 8, 99, -1)))
        pre, mf, tail = o_phase()
        S.add(pre)
        tr.drain()
        S.clock += 8
        for rg in range(4):
            dm = issue(-1, 2, 99, -1)
            emit_group(tr, mf[6 * rg:6 * rg + 6], [], dm, dma_pos=(1, 3), extra=2, compact=False)
            S.add(tail[rg], after=3)
        tr.drain()
        tr.stamp('o')
        st['base'] = st['i']
    E(flat_dma(issue(-1, 99, Cfg.dq if isq else D)))
    tr.stamp('h8')
    reads_due(-1)
    tr.drain()
    misc = []
    A = lambda s, tag=None: misc.append(I(s, tag))
    A('v_lshrrev_b32 v14, 3, v1')
    A('v_and_b32 v15, 7, v1')
    A('v_lshlrev_b32 v15, 4, v15')
    A('v_lshl_add_u32 v8, v14, 10, v15')
    A('s_movk_i32 %s, 144' % sT1)
    A('v_mad_u32_u24 v56, v14, %s, v15' % sT1)
    A('s_add_u32 %s, %s, %d' % (sT2, sW4096, 4 * 16384))
    A('v_add_u32 v56, %s, v56' % sT2)
    A('v_and_b32 v14, 15, v1')
    A('v_lshrrev_b32 v15, 4, v1')
    A('v_lshlrev_b32 v15, 3, v15')
    A('v_mad_u32_u24 v57, v14, %s, v15' % sT1)
    A('v_add_u32 v57, %s, v57' % sT2)
    A('v_lshl_add_u32 v58, v14, 7, v15')
    A('v_add_u32 v58, %s, v58' % sW4096)
    vX = ['v9', 'v10', 'v11', 'v13']
    A('v_add_u32 v9, %s, %s' % (sW4096, vL16))
    for rho in range(1, 4):
        A('v_xor_b32 %s, %d, v9' % (vX[rho], rho * 4096))
    YA = 64
    def ya(rho, T): return YA + (rho * 4 + T) * 4
    sig2, sig3 = signal(S_KV, sMEM, 59, 2), signal(S_KV, sMEM, 60, 3)
    assert not tr.phases
    E(sig3[0] if isq else sig2[0])
    wo_ok = False
    wo_next = 0
    o_done = not isq
    pub_done = isq
    S.add(misc)
    blk = 0
    yw = lambda rho: [([], I('ds_write_b128 v9, %s offset:%d' % (v4(ya(rho, T)), (rho - 1) * 16384 + T * 1024), 'yw')) for T in range(4)]
    ypend = []
    for n2 in range(7):
        for rho in RORD:
            reads_due(blk)
            assert w2.next_read > 2 * n2 + 1, (tr.name, blk, w2.next_read)
            bar = []
            if not pub_done and blk >= (Cfg.pubq if isq else Cfg.pubk):
                bar.append('pub2')
                pub_done = True
            if not o_done and blk >= Cfg.pubo:
                bar.append('pubo')
            if not wo_ok and blk >= WOB:
                assert not w2.wo
                bar.append('wo')
            if bar:
                E('@vm ' + ' '.join(bar))
                E('s_barrier')
                if 'pub2' in bar:
                    E(sig2[1])
                    ring.release_upto(ring.n1 - 1)
                    tr.stamp('pub2')
                if 'pubo' in bar:
                    ring.release_upto(ring.n1 - 1)
                    tr.stamp('pubo')
                    E(sig3[1])
                    o_done = True
                if 'wo' in bar:
                    wo_ok = True
            if wo_ok:
                while wo_next < 2 * n2 + 2 and len(S) < 12:
                    S.add(w2.wo_reads(wo_next), free=True); wo_next += 1
            mf = []
            for T in range(4):
                for e in range(2):
                    n = 2 * n2 + e
                    d = v4(ya(rho, T))
                    mf.append(mfma(d, a4(w2.wd_reg(n) + 4 * T), v4(hreg(2 * blk + e)), '0' if n == 0 else d))
            st['used'] = 2 * blk
            hold = (not pub_done) or (isq and not o_done and Cfg.hold_o)
            dm = issue(blk, 3 if ypend else 5, D, 24 if hold else 99)
            if ypend:
                S.block = S.clock + 9
                emit_group(tr, mf, [], dm + ypend, dma_pos=(0, 1, 2)[:len(dm)] + (3, 4, 5, 6), compact=False)
            else:
                emit_group(tr, mf, [], dm, dma_pos=POS[len(dm)], mem2=len(S) > 8 - len(dm) or n2 == 6)
            blk += 1
            ypend = yw(rho) if (n2 == 6 and rho) else []
        if n2 in (1, 3) or (Cfg.fine and n2 < 6):
            tr.stamp('y%d' % n2)
    tr.stamp('y')
    assert wo_ok and o_done
    while wo_next < 8:
        S.add(w2.wo_reads(wo_next)); wo_next += 1
    wor = [x for ks in range(wo_next, 16) for x in w2.wo_reads(ks)]
    if Cfg.verbose:
        print(tr.name, 'wo_next at y end', wo_next, 'queue', len(S), 'ops left', len(ops) - st['i'])
    XU = 128
    unp = [B('@vm xres')]
    for T in range(4):
        unp.append(I('ds_read_b64 %s, v58 offset:%d' % (v2(48 + 2 * T), 3 * 16384 + 32 * T), 'xr'))
    for T in range(4):
        for e in range(2):
            unp.append(I('v_lshlrev_b32 v%d, 16, v%d' % (XU + 4 * T + 2 * e, 48 + 2 * T + e)))
            unp.append(I('v_and_b32 v%d, 0xffff0000, v%d' % (XU + 4 * T + 2 * e + 1, 48 + 2 * T + e)))
    red = []
    F = lambda s: red.append(I(s))
    for T in range(4):
        for rho in range(1, 4):
            red.append(I('ds_read_b128 %s, %s offset:%d' % (v4(ya(rho, T)), vX[rho], (rho - 1) * 16384 + T * 1024), 'yr'))
    for k in range(16):
        F('v_add_f32 v%d, v%d, v%d' % (YA + k, YA + k, YA + 16 + k))
        F('v_add_f32 v%d, v%d, v%d' % (YA + 32 + k, YA + 32 + k, YA + 48 + k))
        F('v_add_f32 v%d, v%d, v%d' % (YA + k, YA + k, YA + 32 + k))
        F('v_mul_f32 v%d, %s, v%d' % (YA + 16 + k, sNL, YA + k))
        red.append(B('v_exp_f32 v%d, v%d' % (YA + 16 + k, YA + 16 + k), lat=1))
        F('v_add_f32 v%d, 1.0, v%d' % (YA + 16 + k, YA + 16 + k))
        red.append(B('v_rcp_f32 v%d, v%d' % (YA + 16 + k, YA + 16 + k), lat=1))
        F('v_mul_f32 v%d, v%d, v%d' % (YA + k, YA + k, YA + 16 + k))
    SA = 32
    S.add(wor)
    for hb in range(8):
        kb = hb // 2
        if hb == Cfg.ybar:
            E('@lg yw')
            E('s_barrier')
            S.add(red[:12], front=True, free=True); S.add(red[12:]); S.add(unp)
        mf = []
        for T in range(2 * (hb & 1), 2 * (hb & 1) + 2):
            for e in range(4):
                ks = 4 * kb + e
                d = v4(SA + 4 * T)
                mf.append(mfma(d, a4(w2.wo_reg(ks) + 4 * T), v4(hreg(56 + ks)), '0' if ks == 0 else d))
        st['used'] = 56 + 4 * kb
        dm = issue(28 + hb, 4, D, 99)
        emit_group(tr, mf, [], dm, dma_pos=POS[len(dm)], extra=2 if hb >= Cfg.ybar else 0, mem2=hb >= Cfg.ybar)
    assert st['i'] == len(ops)
    tr.drain()
    tr.stamp('s')
    for T in range(4):
        for k in range(4 * T, 4 * T + 4):
            E('v_fma_f32 v%d, v%d, v%d, v%d' % (SA + k, SA + k, YA + k, XU + k))
    for k in range(8):
        E('v_cvt_pk_bf16_f32 v%d, v%d, v%d' % (YA + 16 + k, SA + 2 * k, SA + 2 * k + 1))
    for T in range(4):
        E('ds_write_b64 v57, %s offset:%d' % (v2(YA + 16 + 2 * T), 32 * T), 'ow')
    for i in range(2):
        E('ds_read_b128 %s, v56 offset:%d' % (v4(YA + 32 + 4 * i), i * 8 * 144), 'or')
    E('s_add_u32 %s, %s, 8192' % (sT0, sXO2))
    for i in range(2):
        E('buffer_store_dwordx4 %s, v8, %s, %s offen %s' % (v4(YA + 32 + 4 * i), srd(S_OUT), sT0 if i else sXO2, Cfg.outsc), 'out')
    if Cfg.stamp:
        E('@vm0')
    tr.stamp('end')
    if Cfg.stamp:
        E('@lgkm0')
        for n in range(max(0, tr.nstamp - NST), tr.nstamp):
            E('v_writelane_b32 v0, s%d, %d' % (STAMP0 + 2 * (n % NST), n))
        E('s_lshl_b32 %s, s2, 10' % sT0)
        E('s_lshl_b32 %s, %s, 8' % (sT1, sW))
        E('s_add_u32 %s, %s, %s' % (sT0, sT0, sT1))
        E('v_lshlrev_b32 v40, 2, v1')
        E('buffer_store_dword v0, v40, %s, %s offen' % (srd(S_ST), sT0), 'st')
    E('s_endpgm')


def d_gu(sub, kq, col, unit): return desc_p1(S_WU if sub else S_WG, vDg, 3584, sKg, kq, col, unit * 128)
def d_qkv(kq, const): return desc_p1(S_WQKV, vDq, 3072, sKq, kq, sJ128, const)


WD_ORDER = [0, 1, 8, 9, 2, 3, 10, 11, 4, 5, 12, 13, 6, 7, 14, 15]
O1 = [(k % 2, k // 2) for k in range(8)]


def last_chunk(tr, ring, w2, s0, H, caps):
    for k in range(8):
        H.setdefault((k, 0), {})
        old = H[(k, 0)].get('post')
        H[(k, 0)]['post'] = (lambda k=k, old=old: (setattr(w2, 'xfree', 4 * (k // 2)), old() if old else None))
        for T in range(2):
            H.setdefault((k, T), {})['mem2'] = k >= 2
    run_stages(tr, ring, s0, [(64 if sub else 160, kq, False) for sub, kq in O1], None, hooks=H, w2=w2,
               nx=lambda k, T: Cfg.nxl[2 * k + T], caps=caps)
    tr.stamp('c2')


def trace_k():
    tr = Trace('k')
    S = tr.S
    o0 = [(0, 0), (0, 1), (1, 0), (0, 2), (0, 3), (1, 1), (1, 2), (1, 3)]
    stages = [d_qkv(kq, 2048 if sub else 1024) for sub, kq in o0]
    stages += [d_gu(sub, kq, sU2, 24) for sub, kq in O1] + [d_gu(sub, kq, sJ128, 0) for sub, kq in O1]
    ring = Ring(stages)
    w2 = W2(tr, ring, WD_ORDER)
    prologue(tr, False, stages)
    busy = dict(on=False)
    H = first_hooks(tr, ring, stages)
    H[(4, 0)] = dict(post=lambda: S.add(k_addr() + k_addr2()))
    H[(5, 0)] = dict(post=lambda: (S.add(k_part1(), after=3), busy.update(on=True), w2.enable_wo([3])))
    caps = lambda: Cfg.kcap if busy['on'] else 0
    nx = lambda k, T: (4 if T == 0 else 2) if k >= 3 else 0
    run_stages(tr, ring, 0, [(VB if sub else KB, kq, bool(sub)) for sub, kq in o0], lambda: w_reads(8, 0, FR0, 'w8'), hooks=H, caps=caps, w2=w2, nx=nx,
               close_last=True)
    tr.stamp('c0')
    S.add(k_partv(), after=3, front=True, free=True)
    sig = lambda off: I('buffer_store_dword v223, %s, %s, %s offen sc1' % (vSig, srd(S_KV), off), 'sig')
    tr.phase('lg', 'phiw', lambda: (busy['ready'], S.add(k_part2() + p2_addr(), front=True), busy.update(on=False)), delay=4, name='kp1')
    tr.phase('lg', 'phir', lambda: w2.enable_wo([0, 1, 2]), delay=4, name='kp2')
    tr.phase('vm', 'kvat', lambda: tr.E(sig('s82')), delay=Cfg.at_delay, name='kvdone')
    half_chunk(tr, ring, 8, (128, 144), (FR0, 160), caps,
               {4: lambda: (tr.E([I('@vm zpoll')] + tr.poll_check(S_DBG, '0', 0xff)), busy.update(ready=True))})
    tr.stamp('c1')
    S.add(h_epilogue(128, 144, range(2), sU2, 24, 'pub1', acch), after=3, free=True)
    tr.phase('vm', 'pub1', lambda: tr.E(sig(sMEM)), delay=Cfg.st_delay, name='pub1')
    last_chunk(tr, ring, w2, 16, {(7, 1): dict(post=lambda: tr.E(tr.poll_issue(S_KV, sFL, 'hp0')))}, caps)
    S.add(h_epilogue(160, 64, range(4), sJ128, 0, 'pub2'), front=True)
    phase2(tr, ring, w2, False)
    return tr


def trace_q():
    tr = Trace('q')
    S = tr.S
    o0 = [('q', 0), ('q', 1), (0, 0), ('q', 2), ('q', 3), (0, 1), (1, 0), (1, 1), (0, 2), (1, 2), (0, 3), (1, 3)]
    stages = [d_qkv(kq, 0) if sub == 'q' else d_gu(sub, kq, sJ128, 16) for sub, kq in o0]
    stages += [d_gu(sub, kq, sJ128, 8) for sub, kq in O1]
    ring = Ring(stages)
    w2 = W2(tr, ring, WD_ORDER)
    prologue(tr, True, stages)
    H = first_hooks(tr, ring, stages)
    H[(5, 0)] = dict(post=lambda: (S.add(features(QB, lambda rg: []), after=3), w2.enable_wo(range(4))))
    H[(10, 0)] = dict(post=lambda: tr.E([I('@vm zpoll')] + tr.poll_check(S_DBG, '0', 0xff)))
    H[(11, 0)] = dict(post=lambda: S.add(p2_addr() + ['v_mov_b32 v223, 1'], front=True))
    nx = lambda k, T: (4 if T == 0 else 2) if k >= 3 else 0
    run_stages(tr, ring, 0, [({'q': QB, 0: 64, 1: 96}[sub], kq, False) for sub, kq in o0], lambda: w_reads(12, 0, FR0, 'w12'), hooks=H, w2=w2, nx=nx,
               caps=lambda: Cfg.qcap)
    tr.stamp('c1')
    S.add(h_epilogue(64, 96, range(4), sJ128, 16, 'pub1'), after=3, front=True, free=True)
    tr.phase('vm', 'pub1', lambda: tr.E(I('buffer_store_dword v223, %s, %s, %s offen sc1' % (vSig, srd(S_KV), sMEM), 'sig')), delay=Cfg.st_delay, name='pub1')
    kvoff = [I('s_lshl_b32 %s, %s, 4' % (sT2, sJ)), I('s_add_u32 %s, %s, %s' % (sT2, sT2, sRB)), I('s_lshl_b32 %s, %s, 7' % (sT2, sT2)),
             I('s_add_u32 %s, %s, 64' % (sT2, sT2))]
    last_chunk(tr, ring, w2, 12, {(7, 0): dict(post=lambda: tr.E(kvoff + tr.poll_issue(S_KV, sT2, 'kvpoll')))}, lambda: Cfg.qcap)
    S.add(h_epilogue(160, 64, range(4), sJ128, 8, 'pub2'), front=True)
    tr.drain()
    tr.E('@vm kvpoll')
    tr.E(tr.poll_check(S_KV, sT2, 0xffff))
    tr.stamp('kvpoll')
    def mid():
        w2.xfree = 14
        w2.pump(0)
        tr.drain()
        tr.E('v_mov_b32 v59, 2')
        tr.E('@vm pub2')
        tr.E('s_barrier')
        tr.E(I('buffer_store_dword v59, %s, %s, %s offen sc1' % (vSig, srd(S_KV), sMEM), 'sig'))
        tr.stamp('pub2')
    assert Cfg.NR == 6
    kv_gather(tr, mid)
    tr.stamp('gath')
    tr.E(tr.poll_issue(S_KV, sFL, 'hp0'))
    phase2(tr, ring, w2, True)
    return tr


HEADER = open(__file__.rsplit('/', 1)[0] + '/header.txt').read() if '/' in __file__ else open('header.txt').read()


def generate():
    out = [HEADER.rstrip('\n')]
    out.append('; @launch grid=(256,1,1) block=(256,1,1) lds=163840')
    out.append('.amdgcn_target "amdgcn-amd-amdhsa--gfx950"')
    out.append('.text')
    out.append('.globl ' + NAME)
    out.append('.p2align 8')
    out.append('.type %s,@function' % NAME)
    out.append(NAME + ':')
    head = common_head().L
    out.append(text_of(head))
    k, q = trace_k(), trace_q()
    if Cfg.verbose:
        for t in (k, q):
            for l in t.S.log:
                print(t.name, 'forced', l)
    def fin(t, pc):
        L = finish(t.L)
        L = align_runs(L, pc)[0] if Cfg.align else L
        print(t.name, estimate(L, t.marks, 24 if Cfg.verbose else 0))
        return L
    out.append(text_of(fin(k, sum(sizes_of(head)))))
    out += k.stubs
    out.append('L_end:\n    s_endpgm')
    out.append('.p2align 6')
    out.append('L_trace_q:')
    out.append(text_of(fin(q, 0)))
    out += q.stubs
    out.append('L_code_end:')
    if Cfg.stamp:
        out.append('; STAMPS_K ' + ','.join(k.names))
        out.append('; STAMPS_Q ' + ','.join(q.names))
    out.append('''.section .rodata,"a"
.p2align 6
.amdhsa_kernel %s
  .amdhsa_next_free_vgpr 512
  .amdhsa_next_free_sgpr 102
  .amdhsa_accum_offset 256
  .amdhsa_group_segment_fixed_size 0
  .amdhsa_kernarg_size 88
  .amdhsa_user_sgpr_count 2
  .amdhsa_user_sgpr_kernarg_segment_ptr 1
  .amdhsa_system_sgpr_workgroup_id_x 1
.end_amdhsa_kernel''' % NAME)
    return '\n'.join(out) + '\n'


if __name__ == '__main__':
    for a in sys.argv[2:]:
        k, v = a.split('=', 1)
        setattr(Cfg, k, eval(v))
    open(sys.argv[1], 'w').write(generate())
```
